```python
import torch

def _softmax(x, axis=-1):
    return torch.softmax(x, dim=axis)

def _gelu(x):
    return torch.nn.functional.gelu(x, approximate='tanh')

def _silu(x):
    return torch.nn.functional.silu(x)

def _sigmoid(x):
    return torch.sigmoid(x)

def _layernorm(x, axis=-1, eps=1e-05):
    m = x.mean(dim=axis, keepdim=True)
    v = x.var(dim=axis, keepdim=True, unbiased=False)
    return (x - m) / torch.sqrt(v + eps)

def _scatter_add(tgt, idx, src, axis=0):
    return tgt.clone().index_add_(axis, idx, src)

def _segment_sum(src, seg, n):
    out = torch.zeros((n,) + src.shape[1:], dtype=src.dtype)
    return out.index_add_(0, seg, src)

def _pad(x, pw):
    flat = tuple((v for pair in reversed(pw) for v in pair))
    return torch.nn.functional.pad(x, flat)
kernel_name = 'adaLN_cond__compressed_kv_cla__dense_activation_silu__prompt'

def setup_inputs():

    _w = lambda a: (lambda t: t.to(torch.bfloat16) if t.is_floating_point() else t)(torch.as_tensor(a))

    def _A_setup():
        B, H, Sq, Sk, D, M = (1, 32, 2048, 2048, 128, 512)
        Dc = 4 * D
        return {'x': _w((lambda *s: torch.randn(*s, dtype=torch.bfloat16) * 0.05)(B, Sq, M)), 'c_kv': _w((lambda *s: torch.randn(*s, dtype=torch.bfloat16) * 0.8)(B, Sk, Dc)), 'w_q': _w((lambda *s: torch.randn(*s, dtype=torch.bfloat16) * 1.6)(M, H, D) * M ** (-0.5)), 'w_uk': _w((lambda *s: torch.randn(*s, dtype=torch.bfloat16) * 1.6)(Dc, H, D) * Dc ** (-0.5)), 'w_uv': _w((lambda *s: torch.randn(*s, dtype=torch.bfloat16) * 0.8)(Dc, H, D) * Dc ** (-0.5)), 'w_o': _w((lambda *s: torch.randn(*s, dtype=torch.bfloat16) * 0.8)(H, D, M) * (H * D) ** (-0.5))}
    _A_in = _A_setup()

    def _B_setup():
        B, S, D, F = (1, 2048, 512, 1792)
        return {'x': _w((lambda *s: torch.randn(*s, dtype=torch.bfloat16) * 0.05)(B, S, D)), 'w1': _w((lambda *s: torch.randn(*s, dtype=torch.bfloat16) * 1.6)(D, F) * D ** (-0.5)), 'w2': _w((lambda *s: torch.randn(*s, dtype=torch.bfloat16) * 0.2)(F, D) * F ** (-0.5))}
    _B_in = _B_setup()
    return {'A_x': _A_in['x'], 'A_c_kv': _A_in['c_kv'], 'A_w_q': _A_in['w_q'], 'A_w_uk': _A_in['w_uk'], 'A_w_uv': _A_in['w_uv'], 'A_w_o': _A_in['w_o'], 'B_x': _B_in['x'], 'B_w1': _B_in['w1'], 'B_w2': _B_in['w2'], 'c': _w((lambda *s: torch.randn(*s, dtype=torch.bfloat16) * 0.1)(1, 512) * 8.0), 'w_mod': _w((lambda *s: torch.randn(*s, dtype=torch.bfloat16) * 0.1)(512, 6 * 512) * 512 ** (-0.5) * 8.0)}

def reference(A_x, A_c_kv, A_w_q, A_w_uk, A_w_uv, A_w_o, B_x, B_w1, B_w2, c, w_mod):

    def _A_ref(x, c_kv, w_q, w_uk, w_uv, w_o):
        B, Sq, M = (x.shape[0], x.shape[1], x.shape[2])
        Sk = c_kv.shape[1]
        H, D = (w_q.shape[1], w_q.shape[2])
        q = torch.einsum('bqm,mhd->bhqd', x, w_q)
        k = torch.einsum('bkc,chd->bhkd', c_kv, w_uk)
        v = torch.einsum('bkc,chd->bhkd', c_kv, w_uv)
        scores = torch.einsum('bhqd,bhkd->bhqk', q, k) * D ** (-0.5)
        off = Sk - Sq
        qi = torch.arange(Sq)[:, None]
        kj = torch.arange(Sk)[None, :]
        cmask = kj <= qi + off
        scores = torch.where(cmask[None, None], scores, -1000000000.0)
        p = _softmax(scores, axis=-1)
        ctx = torch.einsum('bhqk,bhkd->bhqd', p, v)
        return torch.einsum('bhqd,hdm->bqm', ctx, w_o)

    def _B_ref(x, w1, w2):
        h = torch.einsum('bsd,df->bsf', x, w1)
        h = _silu(h)
        out = torch.einsum('bsf,fd->bsd', h, w2)
        return out
    x = A_x
    mod = (_silu(c) @ w_mod).reshape(c.shape[0], 6, 1, -1)
    sa, ca, ga, sb, cb, gb = (mod[:, 0].clone(), mod[:, 1].clone(), mod[:, 2].clone(), mod[:, 3].clone(), mod[:, 4].clone(), mod[:, 5].clone())
    h = _layernorm(x, axis=-1) * (1 + ca) + sa
    x = x + ga * _A_ref(h, A_c_kv, A_w_q, A_w_uk, A_w_uv, A_w_o)
    h = _layernorm(x, axis=-1) * (1 + cb) + sb
    x = x + gb * _B_ref(h, B_w1, B_w2)
    return x
```

```python
class Asm:
    g = 0
    def __init__(self):
        self.lines = []
        self.uid = 0
    def __call__(self, s):
        for l in s.strip("\n").split("\n"):
            self.lines.append("    " + l.strip())
    def label(self, l):
        self.lines.append(l + ":")
    def new(self, p="L"):
        Asm.g += 1
        return f"{p}_{Asm.g}"
    def text(self):
        return "\n".join(self.lines) + "\n"

def kernel_head(name):
    return f""".globl {name}
.p2align 8
.type {name},@function
{name}:
"""
def kernel_desc(name, vgpr, sgpr=102, accum=None, ydim=False):
    if accum is None: accum = (vgpr + 3) // 4 * 4
    return f""".section .rodata,"a"
.p2align 6
.amdhsa_kernel {name}
  .amdhsa_next_free_vgpr {vgpr}
  .amdhsa_next_free_sgpr {sgpr}
  .amdhsa_accum_offset {accum}
  .amdhsa_group_segment_fixed_size 0
  .amdhsa_kernarg_size 112
  .amdhsa_user_sgpr_count 2
  .amdhsa_user_sgpr_kernarg_segment_ptr 1
  .amdhsa_system_sgpr_workgroup_id_x 1
.end_amdhsa_kernel
.text
"""
def v(i, n=1): return f"v{i}" if n == 1 else f"v[{i}:{i+n-1}]"
def a(i, n=1): return f"a{i}" if n == 1 else f"a[{i}:{i+n-1}]"
def s(i, n=1): return f"s{i}" if n == 1 else f"s[{i}:{i+n-1}]"
def srd(A, d, base, nbytes):
    A(f"s_mov_b32 s{d}, s{base}")
    A(f"s_and_b32 s{d+1}, s{base+1}, 0xffff")
    A(f"s_mov_b32 s{d+2}, {nbytes}")
    A(f"s_mov_b32 s{d+3}, 0x20000")
```

```python
from gen_common import *
STC = os.environ.get("STC", "sc1")
class VM2:
    def __init__(self, A): self.A = A; self.n = [0, 0]; self.tag = {}; self.done = [0, 0]
    def issue(self, ins, tag=None, loader_only=False):
        self.A(ins); self.n[0] += 1
        if not loader_only: self.n[1] += 1
        if tag is not None: self.tag[tag] = (self.n[0], None if loader_only else self.n[1])
    def wait(self, *tags):
        cs = []; need = False
        for vi in range(2):
            l = [self.tag[t][vi] for t in tags if self.tag[t][vi] is not None]
            if l:
                last = max(l); cs.append(self.n[vi] - last)
                if last > self.done[vi]: need = True
        if not need: return
        c = min(63, min(cs))
        for vi in range(2): self.done[vi] = max(self.done[vi], self.n[vi] - c)
        self.A(f"s_waitcnt vmcnt({c})")

def gen_attn(name="attn_kernel"):
    A = Asm()
    E = f"{name}_end"
    O, QF, SA, SB, NM, CM, KB, VB = 32, 96, 128, 144, 160, 176, 192, 224
    vAc, vAn, vL, vNm, vZ, vT = 4, 5, 6, 7, 8, 9
    BIG = 2.0 ** 100
    A(f"s_cmp_ge_u32 s2, 256"); A(f"s_cbranch_scc1 {E}")
    stamp(A, 0)
    A(f"s_load_dwordx2 s[4:5], s[0:1], {KA['wq']}")
    A(f"s_load_dwordx2 s[10:11], s[0:1], {KA['ws']}")
    A("s_and_b32 s14, s2, 7"); A("s_lshl_b32 s14, s14, 2")
    A("s_lshr_b32 s15, s2, 3"); A("s_and_b32 s15, s15, 3"); A("s_add_u32 s14, s14, s15")
    A("s_lshr_b32 s15, s2, 5")
    A("v_lshrrev_b32 v1, 6, v0"); A("s_nop 0"); A("v_readfirstlane_b32 s16, v1")
    A("v_and_b32 v1, 63, v0"); A("v_lshlrev_b32 v2, 4, v1")
    A("s_lshr_b32 s17, s16, 2")
    A("s_and_b32 s18, s16, 3")
    A("s_sub_u32 s19, 15, s15"); A("s_cmp_eq_u32 s17, 0"); A("s_cselect_b32 s19, s15, s19")
    A("s_lshl_b32 s40, s19, 1"); A("s_add_u32 s40, s40, 2")
    A("s_lshl_b32 s41, s15, 1"); A("s_sub_u32 s41, 32, s41")
    A("s_lshl_b32 s42, s19, 2"); A("s_add_u32 s42, s42, s18")
    A("s_waitcnt lgkmcnt(0)")
    srd(A, 24, 4, 512*4096*2)
    srd(A, 32, 10, WS_SIZE)
    A("v_lshrrev_b32 v10, 4, v1")
    A("v_and_b32 v11, 15, v1"); A("v_lshlrev_b32 v12, 2, v10"); A("v_xor_b32 v11, v11, v12"); A("v_lshlrev_b32 v11, 4, v11")
    A("s_lshl_b32 s20, s16, 4"); A("v_add_u32 v12, s20, v10"); A("v_lshlrev_b32 v12, 13, v12")
    A("s_lshl_b32 s20, s14, 8"); A("v_add_u32 v12, s20, v12"); A("v_add_u32 v24, v12, v11")
    for j in range(1, 4): A(f"v_add_u32 v{24+j}, {j*(4*8192-1024)}, v24")
    A("s_lshl_b32 s43, s42, 15"); A(f"s_add_u32 s43, s43, {WS_H1}")
    A("s_lshl_b32 s44, s14, 20"); A(f"s_add_u32 s44, s44, {WS_KV}")
    A("s_lshl_b32 s20, s18, 13"); A("s_add_u32 s45, s44, s20")
    A("s_lshl_b32 s46, s18, 13")
    vm = VM2(A)
    def wdma(c):
        A(f"s_lshl_b32 s20, s16, 12"); A(f"s_mov_b32 s21, {128*c*8192}"); A(f"s_add_u32 m0, s20, {c*32768}"); A("s_nop 0")
        for j in range(4): vm.issue(f"buffer_load_dwordx4 v{24+j}, s[24:27], s21 offen offset:{1024*j} lds", ('W', c))
    def hload(s_):
        A(f"s_add_u32 s47, s43, {(s_//4)*4096}")
        vm.issue(f"buffer_load_dwordx4 v[{128+4*s_}:{131+4*s_}], v2, s[32:35], s47 offen offset:{1024*(s_%4)}", ('H', s_))
    def tile_dma_static(t):
        L = A.new("td")
        A("s_cmp_lg_u32 s17, 0"); A(f"s_cbranch_scc1 {L}")
        slot = (t + 4) % 5
        for half in range(2):
            A(f"s_add_u32 s47, s45, {t*32768 + half*4096}"); A(f"s_add_u32 m0, s46, {slot*32768 + half*4096}"); A("s_nop 0")
            for i in range(4): vm.issue(f"buffer_load_dwordx4 v2, s[32:35], s47 offen offset:{1024*i} lds", ('T', t), loader_only=True)
        A.label(L)
    wdma(0)
    for s_ in range(8): hload(s_)
    wdma(1)
    A("v_lshrrev_b32 v10, 4, v1"); A("v_bfe_u32 v11, v1, 2, 2"); A("v_and_b32 v12, 3, v1")
    A("v_lshrrev_b32 v13, 1, v10"); A("v_lshlrev_b32 v13, 3, v13"); A("v_add_u32 v13, v13, v11"); A("v_lshlrev_b32 v13, 8, v13")
    A("v_and_b32 v14, 1, v10"); A("v_lshlrev_b32 v14, 1, v14"); A("v_lshrrev_b32 v15, 1, v12"); A("v_add_u32 v14, v14, v15"); A("v_lshlrev_b32 v14, 4, v14")
    A("v_and_b32 v15, 1, v12"); A("v_lshlrev_b32 v15, 3, v15"); A("v_add_u32 v14, v14, v15"); A("v_add_u32 v13, v13, v14")
    for nb in range(4):
        A(f"v_xor_b32 v14, {nb}, v11"); A("v_lshlrev_b32 v14, 6, v14"); A(f"v_add_u32 v{16+nb}, v13, v14")
        A(f"v_add_u32 v{20+nb}, 0x10000, v{16+nb}")
    WB = [96, 112]
    def wreads(s_, setb, nb):
        ar = (16 if s_ < 16 else 20) + nb; off = (s_ % 16) * 4096; r = WB[setb] + 4*nb
        return [f"ds_read_b64_tr_b16 v[{r}:{r+1}], v{ar} offset:{off}", f"ds_read_b64_tr_b16 v[{r+2}:{r+3}], v{ar} offset:{off+1024}"]
    for s_ in range(32):
        if s_ == 0:
            vm.wait(('W', 0)); A("s_barrier")
            stamp(A, 1)
            for nb in range(4):
                for l in wreads(0, 0, nb): A(l)
        nxt = s_ + 1
        if nxt % 8 == 0 and nxt < 32:
            vm.wait(('W', nxt // 8)); A("s_barrier")
            if nxt == 16: tile_dma_static(1)
            if nxt == 24: tile_dma_static(2)
        vm.wait(('H', s_))
        for nb in range(4):
            A(f"s_waitcnt lgkmcnt({6-2*nb if s_ == 31 else 6})")
            w = f"v[{WB[s_%2]+4*nb}:{WB[s_%2]+4*nb+3}]"; d = f"v[{O+16*nb}:{O+16*nb+15}]"
            A(f"v_mfma_f32_32x32x16_bf16 {d}, {w}, v[{128+4*s_}:{131+4*s_}], {'0' if s_ == 0 else d}")
            if s_ < 31:
                for l in wreads(s_+1, (s_+1) % 2, nb): A(l)
            if nb == 0 and s_ < 24: hload(s_ + 8)
            if nb == 2 and s_ == 0: wdma(2)
            if nb == 2 and s_ == 2: wdma(3)
            if nb == 2 and s_ == 4: tile_dma_static(0)
    stamp(A, 2)
    vm.wait(('T', 0)); A("s_barrier")
    tile_dma_static(3)
    A(f"v_add_u32 v{vAc}, {4*32768}, v2")
    A(f"v_mov_b32 v{vAn}, v2")
    for f in range(8): A(f"ds_read_b128 v[{KB+4*f}:{KB+4*f+3}], v{vAc} offset:{f*1024}")
    A(f"s_mov_b32 s20, {hx(LOG2E / 128 ** 0.5)}")
    A("s_nop 7")
    for i in range(64): A(f"v_mul_f32 v{O+i}, s20, v{O+i}")
    for i in range(32): A(f"v_cvt_pk_bf16_f32 v{QF+i}, v{O+2*i}, v{O+2*i+1}")
    A("v_and_b32 v10, 31, v1"); A("v_lshrrev_b32 v11, 5, v1"); A("v_lshlrev_b32 v11, 2, v11"); A("v_sub_u32 v10, v10, v11")
    A("s_lshl_b32 s20, s42, 5"); A("v_add_u32 v10, s20, v10"); A("v_cvt_f32_i32 v10, v10"); A("v_add_f32 v10, 0.5, v10")
    A(f"v_mul_f32 v{vZ}, {hx(BIG)}, v10")
    def s_mfma(dst, f, c):
        d = f"v[{dst}:{dst+15}]"
        return f"v_mfma_f32_32x32x16_bf16 {d}, v[{KB+4*f}:{KB+4*f+3}], v[{QF+4*f}:{QF+4*f+3}], {c if f == 0 else d}"
    def pv_mfma(P, i, first=False):
        t, db = i // 4, i % 4
        d = f"v[{O+16*db}:{O+16*db+15}]"
        return f"v_mfma_f32_32x32x16_bf16 {d}, v[{VB+4*i}:{VB+4*i+3}], v[{P+4*t}:{P+4*t+3}], {'0' if first else d}"
    def cm_ops(nmreg):
        ops = []
        for r in range(16):
            k = 8*(r//4) + r % 4
            ops.append(f"v_add_f32 v{CM+r}, {hx(-k*BIG)}, v{vZ}" if k else f"v_mov_b32 v{CM}, v{vZ}")
            ops.append(f"v_min_f32 v{CM+r}, v{CM+r}, v{nmreg}")
        return ops
    zdec = f"v_add_f32 v{vZ}, {hx(-32*BIG)}, v{vZ}"
    A("s_waitcnt lgkmcnt(0)")
    for f in range(8): A(s_mfma(SA, f, "0"))
    for f in range(8): A(f"ds_read_b128 v[{KB+4*f}:{KB+4*f+3}], v{vAc} offset:{16384+f*1024}")
    for i in range(64): A(f"v_mov_b32 v{O+i}, 0")
    A(f"v_mov_b32 v{vL}, 0")
    A(f"v_mov_b32 v10, v{SA}"); A(f"v_mov_b32 v11, v{SA}"); A("s_nop 1")
    A("v_permlane32_swap_b32 v10, v11")
    A("s_nop 1")
    A(f"v_sub_f32 v{vNm}, 0, v10")
    for r in range(16): A(f"v_mov_b32 v{NM+r}, v{vNm}")
    for l in cm_ops(vNm): A(l)
    for r in range(16): A(f"v_add_f32 v{SA+r}, v{SA+r}, v{CM+r}")
    A(zdec)
    def exp_(S, r): return f"v_exp_f32 v{S+r}, v{S+r}"
    def add_(S, r): return f"v_add_f32 v{vL}, v{vL}, v{S+r}"
    def cvt_(S, i): return f"v_cvt_pk_bf16_f32 v{S+i}, v{S+2*i}, v{S+2*i+1}"
    for r in range(6): A(exp_(SA, r))
    A("s_nop 0")
    for r in range(5): A(add_(SA, r))
    for i in range(2): A(cvt_(SA, i))
    A("s_mov_b32 s48, 0"); A(f"s_mov_b32 s49, {3*32768}"); A(f"s_add_u32 s50, s45, {4*32768}"); A("s_mov_b32 s51, 0")
    stamp(A, 3)

    def xsync():
        L1, L2, L3 = A.new("x"), A.new("x"), A.new("x")
        ops = []
        ops.append(f"s_add_u32 s52, s48, 3\ns_cmp_lt_u32 s52, s41\ns_cbranch_scc1 {L1}\ns_waitcnt vmcnt(0)\n{L1}:\ns_waitcnt vmcnt(16)\ns_barrier")
        return ops
    def dma_next():
        L = A.new("dn")
        s = [f"s_add_u32 s52, s48, 4", "s_cmp_lt_u32 s52, s41", "s_cselect_b32 s52, 1, 0", "s_andn2_b32 s52, s52, s17", "s_cmp_eq_u32 s52, 0", f"s_cbranch_scc1 {L}"]
        for half in range(2):
            s += [f"s_add_u32 s47, s50, {half*4096}", f"s_add_u32 s53, s49, {half*4096}", "s_add_u32 m0, s46, s53", "s_nop 0"]
            for i in range(4): s.append(f"buffer_load_dwordx4 v2, s[32:35], s47 offen offset:{1024*i} lds")
        s.append(f"{L}:")
        return s
    def adv_state():
        return [f"s_add_u32 s48, s48, 1", "s_add_u32 s50, s50, 32768",
                "s_add_u32 s49, s49, 32768", "s_cmp_eq_u32 s49, 163840", "s_cselect_b32 s49, 0, s49",
                "s_add_u32 s51, s51, 32768", "s_cmp_eq_u32 s51, 163840", "s_cselect_b32 s51, 0, s51"]
    def emit(l):
        for x in l.split("\n"):
            if x.endswith(":"): A.label(x[:-1])
            else: A(x)
    def body(masked, final):
        fill = [[] for _ in range(32)]
        pre = [[] for _ in range(33)]
        def put(g, l): fill[g].append(l)
        sm = [[] for _ in range(32)]
        for r in range(6, 16): sm[r-6].append(exp_(SA, r))
        for r in range(5, 16): sm[r-5].append(add_(SA, r))
        for i in range(2, 8): sm[2*i-4].append(cvt_(SA, i))
        for r in range(16): sm[10+r].append(exp_(SB, r))
        for r in range(16): sm[11+r].append(add_(SB, r))
        for i in range(8): sm[12+2*i].append(cvt_(SB, i))
        if not final:
            for r in range(6): sm[26+r].append(exp_(SA, r))
            for r in range(5): sm[27+r].append(add_(SA, r))
            for i in range(2): sm[28+2*i].append(cvt_(SA, i))
        for g in range(32):
            adds = [x for x in sm[g] if x.startswith("v_add")]; cv = [x for x in sm[g] if x.startswith("v_cvt")]; ex = [x for x in sm[g] if x.startswith("v_exp")]
            sm[g] = ex + adds + cv if False else adds + cv + ex
        rd = [[] for _ in range(32)]
        def reads(g0, dst, areg, off):
            for k in range(8): rd[g0 + k//2].append(f"ds_read_b128 v[{dst+4*k}:{dst+4*k+3}], v{areg} offset:{off+k*1024}")
        reads(0, VB, vAc, 8192)
        if not final: reads(8, KB, vAn, 0)
        reads(16, VB, vAc, 16384+8192)
        if not final: reads(24, KB, vAn, 16384)
        mk = [[] for _ in range(32)]
        if masked and not final:
            ops = [zdec] + cm_ops(vNm)
            for k, o in enumerate(ops): mk[9 + min(6, k // 5)].append(o)
            ops = [zdec] + cm_ops(vNm)
            for k, o in enumerate(ops): mk[24 + min(7, k // 5)].append(o)
        cS = f"v[{CM}:{CM+15}]" if masked else f"v[{NM}:{NM+15}]"
        g = 0
        for grp in range(4):
            if final and grp == 2:
                A("s_nop 7")
                for gg in range(16, 24):
                    for l in rd[gg] + sm[gg]: A(l)
                    A("s_nop 0")
                continue
            A("s_waitcnt lgkmcnt(0)")
            if grp == 1:
                for l in xsync(): emit(l)
            if masked and grp == 2: A("s_nop 1")
            for k in range(8):
                g = 8*grp + k
                if grp == 0: A(s_mfma(SB, k, cS))
                elif grp == 1: A(pv_mfma(SA, k))
                elif grp == 2: A(s_mfma(SA, k, cS))
                else: A(pv_mfma(SB, k))
                for l in rd[g]: A(l)
                for l in sm[g]: A(l)
                for l in mk[g]: A(l)
                if g == 12:
                    for l in dma_next(): emit(l)
                if g == 30:
                    A(f"v_mov_b32 v{vAc}, v{vAn}")
                if g == 31:
                    for l in adv_state(): A(l)
                    A(f"v_add_u32 v{vAn}, s51, v2")
    LN_, LM_, LF_ = A.new("bn"), A.new("bm"), A.new("bf")
    A("s_sub_i32 s54, s40, 3" if False else "s_add_i32 s54, s40, -3")
    A("s_cmp_ge_i32 s48, s54"); A(f"s_cbranch_scc1 {LN_}_done")
    A.label(LN_)
    body(False, False)
    A("s_cmp_lt_i32 s48, s54"); A(f"s_cbranch_scc1 {LN_}")
    A.label(f"{LN_}_done")
    A("s_lshl_b32 s52, s48, 6"); A("v_cvt_f32_u32 v10, s52"); A(f"v_mul_f32 v10, {hx(BIG)}, v10"); A(f"v_sub_f32 v{vZ}, v{vZ}, v10")
    for l in cm_ops(vNm): A(l)
    A("s_add_u32 s54, s40, -1")
    A.label(LM_)
    body(True, False)
    A("s_cmp_lt_u32 s48, s54"); A(f"s_cbranch_scc1 {LM_}")
    body(True, True)
    stamp(A, 4)
    A(f"v_mov_b32 v10, v{vL}"); A(f"v_mov_b32 v11, v{vL}"); A("s_nop 1")
    A("v_permlane32_swap_b32 v10, v11"); A("s_nop 1")
    A(f"v_add_f32 v{vL}, v10, v11")
    A(f"v_mov_b32 v12, {hx(2.0**80)}")
    A(f"v_cmp_nlt_f32 vcc, v{vL}, v12")
    A(f"s_cbranch_vccnz {name}_fb")
    A.label(f"{name}_fin")
    A(f"v_rcp_f32 v10, v{vL}"); A("s_nop 7"); A("s_nop 3")
    for i in range(64): A(f"v_mul_f32 v{O+i}, v{O+i}, v10")
    A("s_lshl_b32 s20, s42, 18"); A("s_lshl_b32 s21, s14, 13"); A("s_add_u32 s20, s20, s21"); A(f"s_add_u32 s20, s20, {WS_CTX}"); A("s_add_u32 s21, s20, 4096")
    for db in range(4):
        a0 = O + 16*db
        for i in range(8): A(f"v_cvt_pk_bf16_f32 v{a0+i}, v{a0+2*i}, v{a0+2*i+1}")
        for t in range(2):
            f = 2*db + t
            A(f"buffer_store_dwordx4 v[{a0+4*t}:{a0+4*t+3}], v2, s[32:35], s{20 + f//4} offen offset:{(f%4)*1024} {STC}")
    LL = A.new("ll")
    A("s_cmp_ge_u32 s48, s41"); A(f"s_cbranch_scc1 {name}_out")
    A.label(LL)
    for l in xsync(): emit(l)
    for l in dma_next(): emit(l)
    for l in adv_state(): A(l)
    A("s_cmp_lt_u32 s48, s41"); A(f"s_cbranch_scc1 {LL}")
    A.label(f"{name}_out")
    if PROF: A("s_waitcnt vmcnt(0)")
    stamp(A, 5)
    stamp_out(A, 6, 37, 16, 4, 0)
    stamp_out(A, 6, 37, 16, 0, 8)
    A("s_endpgm")
    A.label(f"{name}_fb")
    FL = A.new("fl")
    for i in range(64): A(f"v_mov_b32 v{O+i}, 0")
    A(f"v_mov_b32 v{vL}, 0"); A(f"v_mov_b32 v{vNm}, {hx(-3.0e38)}")
    A("v_and_b32 v10, 31, v1"); A("v_lshrrev_b32 v11, 5, v1"); A("v_lshlrev_b32 v11, 2, v11"); A("v_sub_u32 v10, v10, v11")
    A("s_lshl_b32 s20, s42, 5"); A("v_add_u32 v10, s20, v10"); A("v_cvt_f32_i32 v10, v10"); A("v_add_f32 v10, 0.5, v10")
    A(f"v_mul_f32 v{vZ}, {hx(BIG)}, v10")
    A("v_mov_b32 v12, 0")
    A("s_mov_b32 s55, 0"); A("s_mov_b32 s56, s44")
    A.label(FL)
    for q in range(4):
        A(f"s_add_u32 s57, s56, {q*4096}")
        for i in range(4):
            f = 4*q + i; dst = (KB + 4*f) if f < 8 else (VB + 4*(f-8))
            A(f"buffer_load_dwordx4 v[{dst}:{dst+3}], v2, s[32:35], s57 offen offset:{1024*i}")
    for l in cm_ops(12): A(l)
    A(zdec)
    A("s_waitcnt vmcnt(0)")
    for f in range(8): A(s_mfma(SA, f, f"v[{CM}:{CM+15}]"))
    A("s_nop 7"); A("s_nop 7")
    A(f"v_max_f32 v10, v{SA}, v{SA+1}")
    for r in range(2, 16): A(f"v_max_f32 v10, v10, v{SA+r}")
    A("v_mov_b32 v11, v10"); A("s_nop 1"); A("v_permlane32_swap_b32 v10, v11"); A("s_nop 1")
    A("v_max_f32 v10, v10, v11"); A(f"v_max_f32 v10, v10, v{vNm}")
    A(f"v_sub_f32 v11, v{vNm}, v10"); A("v_exp_f32 v11, v11"); A(f"v_mov_b32 v{vNm}, v10")
    for r in range(16): A(f"v_sub_f32 v{SA+r}, v{SA+r}, v10")
    for r in range(16): A(exp_(SA, r))
    A("s_nop 0")
    A(f"v_mul_f32 v{vL}, v{vL}, v11")
    for r in range(16): A(add_(SA, r))
    for i in range(8): A(cvt_(SA, i))
    for i in range(64): A(f"v_mul_f32 v{O+i}, v{O+i}, v11")
    A("s_nop 1")
    for k in range(8): A(pv_mfma(SA, k))
    A("s_nop 7"); A("s_nop 7")
    A("s_add_u32 s56, s56, 16384"); A("s_add_u32 s55, s55, 1"); A("s_cmp_le_u32 s55, s42"); A(f"s_cbranch_scc1 {FL}")
    A(f"v_mov_b32 v10, v{vL}"); A(f"v_mov_b32 v11, v{vL}"); A("s_nop 1")
    A("v_permlane32_swap_b32 v10, v11"); A("s_nop 1")
    A(f"v_add_f32 v{vL}, v10, v11")
    A(f"s_branch {name}_fin")
    A.label(E); A("s_endpgm")
    return kernel_head(name) + A.text() + kernel_desc(name, 256), f"; @launch kernel={name} grid=(256,1,1) block=(512,1,1) lds=163840\n"
```

```python
from asmlib import *
KA = dict(x=0, ckv=8, wq=16, wuk=24, wuv=32, wo=40, bx=48, w1=56, w2=64, c=72, wmod=80, out=88, dbg=96, ws=104)
WS_MOD  = 0x0
WS_H1   = 0x100000
WS_CF   = 0x400000
WS_KV   = 0x1000000
WS_CTX  = 0x3000000
WS_PART = 0x4000000
WS_X1   = 0x5000000
WS_H2   = 0x5200000
WS_HID  = 0x5400000
WS_SIZE = 0x10000000
LOG2E = 1.4426950408889634

import struct
def f2u(x): return struct.unpack("<I", struct.pack("<f", x))[0]
def hx(x): return "0x%08x" % f2u(x)

def wave_sum(A, vr, sdst):
    for sh in (1, 2, 4, 8):
        A("s_nop 1")
        A(f"v_add_f32_dpp v{vr}, v{vr}, v{vr} row_shr:{sh} row_mask:0xf bank_mask:0xf bound_ctrl:0")
    A("s_nop 1")
    A(f"v_add_f32_dpp v{vr}, v{vr}, v{vr} row_bcast:15 row_mask:0xa bank_mask:0xf")
    A("s_nop 1")
    A(f"v_add_f32_dpp v{vr}, v{vr}, v{vr} row_bcast:31 row_mask:0xc bank_mask:0xf")
    A("s_nop 1")
    A(f"v_readlane_b32 s{sdst}, v{vr}, 63")
    A("s_nop 3")

def unpack_bf16(A, src, dst, n):
    for i in range(n):
        A(f"v_lshlrev_b32 v{dst+2*i}, 16, v{src+i}")
        A(f"v_and_b32 v{dst+2*i+1}, 0xffff0000, v{src+i}")

def layernorm_row(A, xf, n, gam, bet, st, tmp):
    N = 64 * n
    A(f"v_add_f32 v{tmp}, v{xf}, v{xf+1}")
    for i in range(2, n): A(f"v_add_f32 v{tmp}, v{tmp}, v{xf+i}")
    wave_sum(A, tmp, st)
    A(f"v_mov_b32 v{tmp}, {hx(-1.0/N)}")
    A(f"v_mul_f32 v{tmp}, s{st}, v{tmp}")
    for i in range(n): A(f"v_add_f32 v{xf+i}, v{xf+i}, v{tmp}")
    A(f"v_mul_f32 v{tmp}, v{xf}, v{xf}")
    for i in range(1, n): A(f"v_fmac_f32 v{tmp}, v{xf+i}, v{xf+i}")
    wave_sum(A, tmp, st)
    A(f"v_mov_b32 v{tmp}, {hx(1.0/N)}")
    A(f"v_mul_f32 v{tmp}, s{st}, v{tmp}")
    A(f"v_add_f32 v{tmp}, {hx(1e-5)}, v{tmp}")
    A(f"v_rsq_f32 v{tmp}, v{tmp}")
    A("s_nop 0")
    for i in range(n): A(f"v_mul_f32 v{xf+i}, v{xf+i}, v{tmp}")
    for i in range(n): A(f"v_fma_f32 v{xf+i}, v{xf+i}, v{gam+i}, v{bet+i}")

def round_bf16_inplace(A, r, n, tmp):
    for i in range(0, n, 2):
        A(f"v_cvt_pk_bf16_f32 v{tmp}, v{r+i}, v{r+i+1}")
        A(f"v_lshlrev_b32 v{r+i}, 16, v{tmp}")
        A(f"v_and_b32 v{r+i+1}, 0xffff0000, v{tmp}")

import os
PROF = os.environ.get("PROF", "") != ""
def stamp(A, i):
    if PROF:
        A(f"s_memtime s[{80+2*i}:{81+2*i}]")
        if i == 0: A("s_memrealtime s[96:97]")
def stamp_out(A, n, wg, wave_sreg, wave, base=0):
    if not PROF: return
    L = A.new("po")
    A("s_waitcnt lgkmcnt(0)")
    A(f"s_cmp_lg_u32 s2, {wg}"); A(f"s_cbranch_scc1 {L}")
    A(f"s_cmp_lg_u32 s{wave_sreg}, {wave}"); A(f"s_cbranch_scc1 {L}")
    A(f"s_load_dwordx2 s[76:77], s[0:1], {KA['dbg']}"); A("s_waitcnt lgkmcnt(0)")
    A("s_and_b32 s77, s77, 0xffff"); A("s_mov_b32 s78, 256"); A("s_mov_b32 s79, 0x20000")
    A("v_mov_b32 v1, 0")
    for i in range(1, n):
        A(f"s_sub_u32 s75, s{80+2*i}, s80"); A("v_mov_b32 v0, s75")
        A(f"buffer_store_dword v0, v1, s[76:79], 0 offen offset:{4*(base+i)}")
    A("s_memrealtime s[98:99]"); A("s_waitcnt lgkmcnt(0)")
    A("s_sub_u32 s75, s98, s96"); A("v_mov_b32 v0, s75")
    A(f"buffer_store_dword v0, v1, s[76:79], 0 offen offset:{4*base}")
    A("s_waitcnt vmcnt(0)")
    A.label(L)

class VM:
    def __init__(self, A): self.A = A; self.n = 0; self.tag = {}
    def issue(self, ins, tag=None):
        self.A(ins); self.n += 1
        if tag is not None: self.tag[tag] = self.n
    def need(self, *tags):
        last = max(self.tag[t] for t in tags)
        return min(63, self.n - last)
    def wait(self, *tags, extra=""):
        c = self.need(*tags)
        if getattr(self, "done", 0) >= max(self.tag[t] for t in tags) and not extra: return
        self.done = max(getattr(self, "done", 0), self.n - c)
        self.A(f"s_waitcnt vmcnt({c}) {extra}".strip())
```

```python
from gen_common import *
STC = os.environ.get("STC", "sc1")
def gen_kv(name="kv_kernel"):
    A = Asm()
    E = f"{name}_end"
    A(f"s_cmp_ge_u32 s2, 256"); A(f"s_cbranch_scc1 {E}")
    stamp(A, 0)
    A(f"s_load_dwordx2 s[4:5], s[0:1], {KA['ckv']}")
    A(f"s_load_dwordx2 s[6:7], s[0:1], {KA['wuk']}")
    A(f"s_load_dwordx2 s[8:9], s[0:1], {KA['wuv']}")
    A(f"s_load_dwordx2 s[10:11], s[0:1], {KA['ws']}")
    A(f"s_load_dwordx2 s[12:13], s[0:1], {KA['x']}")
    A("s_and_b32 s14, s2, 7"); A("s_lshl_b32 s14, s14, 2")
    A("s_lshr_b32 s15, s2, 3"); A("s_and_b32 s15, s15, 3"); A("s_add_u32 s14, s14, s15")
    A("s_bfe_u32 s17, s2, 0x10005")
    A("s_lshr_b32 s15, s2, 6")
    A("v_lshrrev_b32 v1, 6, v0"); A("s_nop 0"); A("v_readfirstlane_b32 s16, v1")
    A("v_and_b32 v1, 63, v0")
    A("s_waitcnt lgkmcnt(0)")
    A("s_cmp_eq_u32 s17, 0"); A("s_cselect_b32 s6, s6, s8"); A("s_cselect_b32 s7, s7, s9")
    srd(A, 20, 4, 2048*512*2)
    srd(A, 24, 6, 512*4096*2)
    srd(A, 32, 10, WS_SIZE)
    srd(A, 36, 12, 2048*512*2)
    A("v_lshrrev_b32 v6, 4, v1")
    A("v_and_b32 v5, 15, v1"); A("v_lshlrev_b32 v7, 2, v6"); A("v_xor_b32 v5, v5, v7"); A("v_lshlrev_b32 v5, 4, v5")
    A("s_lshl_b32 s18, s16, 5"); A("v_add_u32 v7, s18, v6"); A("v_lshlrev_b32 v7, 13, v7")
    A("s_lshl_b32 s18, s14, 8"); A("v_add_u32 v7, s18, v7"); A("v_add_u32 v10, v7, v5")
    for j in range(1, 4): A(f"v_add_u32 v{10+j}, {j*(4*8192-1024)}, v10")
    A("v_lshlrev_b32 v14, 4, v1")
    A("s_lshl_b32 s40, s15, 9"); A("s_lshl_b32 s18, s16, 7"); A("s_add_u32 s40, s40, s18"); A("s_lshl_b32 s40, s40, 10"); A(f"s_add_u32 s40, s40, {WS_CF}")
    def cload(s_, base):
        return f"s_add_u32 s47, s{base}, {(s_//4)*4096}\nbuffer_load_dwordx4 a[{4*s_}:{4*s_+3}], v14, s[32:35], s47 offen offset:{1024*(s_%4)}"
    def wdma_ops(c):
        ops = []
        for half in range(2):
            for j in range(4):
                pre = []
                if j == 0: pre = [f"s_lshl_b32 s18, s16, 13", f"s_mov_b32 s19, {(128*c + 16*half)*8192}", f"s_add_u32 m0, s18, {c*32768 + half*4096}", "s_nop 0"]
                ops.append((pre, f"buffer_load_dwordx4 v{10+j}, s[24:27], s19 offen offset:{1024*j} lds"))
        return ops
    PRO = []
    A("v_lshrrev_b32 v4, 4, v1"); A("v_bfe_u32 v5, v1, 2, 2"); A("v_and_b32 v6, 3, v1")
    A("v_lshrrev_b32 v7, 1, v4"); A("v_lshlrev_b32 v7, 3, v7"); A("v_add_u32 v7, v7, v5"); A("v_lshlrev_b32 v7, 8, v7")
    A("v_and_b32 v8, 1, v4"); A("v_lshlrev_b32 v8, 1, v8"); A("v_lshrrev_b32 v9, 1, v6"); A("v_add_u32 v8, v8, v9"); A("v_lshlrev_b32 v8, 4, v8")
    A("v_and_b32 v9, 1, v6"); A("v_lshlrev_b32 v9, 3, v9"); A("v_add_u32 v8, v8, v9"); A("v_add_u32 v7, v7, v8")
    for nb in range(4):
        A(f"v_xor_b32 v8, {nb}, v5"); A("v_lshlrev_b32 v8, 6, v8"); A(f"v_add_u32 v{16+nb}, v7, v8")
        A(f"v_add_u32 v{20+nb}, 0x10000, v{16+nb}")
    A("v_lshlrev_b32 v2, 4, v1")
    A("s_lshl_b32 s41, s14, 6"); A("s_lshl_b32 s18, s15, 4"); A("s_add_u32 s41, s41, s18"); A("s_lshl_b32 s18, s16, 2"); A("s_add_u32 s41, s41, s18")
    A("s_lshl_b32 s41, s41, 14"); A(f"s_add_u32 s41, s41, {WS_KV}"); A("s_lshl_b32 s18, s17, 13"); A("s_add_u32 s41, s41, s18")
    WB = [32, 48]; ACC = [128, 192]
    def wreads(s_, setb, nb):
        ar = (16 if s_ < 16 else 20) + nb; off = (s_ % 16) * 4096
        r = WB[setb] + 4*nb
        return [f"ds_read_b64_tr_b16 v[{r}:{r+1}], v{ar} offset:{off}", f"ds_read_b64_tr_b16 v[{r+2}:{r+3}], v{ar} offset:{off+1024}"]
    def body(ktype):
        vm = VM(A)
        def dma(c, j):
            pre, ins = wdma_ops(c)[j]
            for l in pre: A(l)
            vm.issue(ins, ('D', c, j))
        def cl_(p, s_, base):
            A(f"s_add_u32 s47, s{base}, {(s_//4)*4096}")
            vm.issue(f"buffer_load_dwordx4 a[{4*s_}:{4*s_+3}], v14, s[32:35], s47 offen offset:{1024*(s_%4)}", ('C', p, s_))
        for j in range(8): dma(0, j)
        for s_ in range(8): cl_(0, s_, 40)
        for j in range(8): dma(1, j)
        def epi_items(acc, sb):
            it = []
            for nb in range(4):
                a0 = acc + 16*nb
                for i in range(8): it.append(('v', f"v_cvt_pk_bf16_f32 v{a0+i}, v{a0+2*i}, v{a0+2*i+1}"))
                for t in range(2):
                    f = (2*nb + t) if ktype else (4*t + nb)
                    it.append(('s', f"buffer_store_dwordx4 v[{a0+4*t}:{a0+4*t+3}], v2, s[32:35], s{sb + f//4} offen offset:{(f%4)*1024} {STC}"))
            return it
        def emit_epi(it):
            if it[0] == 'v': A(it[1])
            else: vm.issue(it[1])
        dq = [(c, j) for c in (2, 3) for j in range(8)]
        def pas(p):
            acc = ACC[p % 2]
            epi = []
            if p > 0:
                A(f"s_add_u32 s42, s41, {(p-1)*16384}"); A(f"s_add_u32 s43, s41, {(p-1)*16384+4096}")
                epi = epi_items(ACC[(p-1) % 2], 42)
            if p < 3: A(f"s_add_u32 s44, s40, {(p+1)*32768}")
            for s_ in range(32):
                if p == 0 and s_ == 0:
                    vm.wait(('D', 0, 7)); A("s_barrier")
                    stamp(A, 1)
                    for nb in range(4):
                        for l in wreads(0, 0, nb): A(l)
                nxt = s_ + 1
                if p == 0 and nxt % 8 == 0 and nxt < 32:
                    vm.wait(('D', nxt // 8, 7)); A("s_barrier")
                vm.wait(('C', p, s_))
                for nb in range(4):
                    A(f"s_waitcnt lgkmcnt({6-2*nb if (p == 3 and s_ == 31) else 6})")
                    w = f"v[{WB[s_%2]+4*nb}:{WB[s_%2]+4*nb+3}]"; c_ = f"a[{4*s_}:{4*s_+3}]"
                    a_, b_ = (w, c_) if ktype else (c_, w)
                    d = f"v[{acc+16*nb}:{acc+16*nb+15}]"
                    A(f"v_mfma_f32_32x32x16_bf16 {d}, {a_}, {b_}, {'0' if s_ == 0 else d}")
                    if not (p == 3 and s_ == 31):
                        for l in wreads((s_+1) % 32, (s_+1) % 2, nb): A(l)
                    if p == 0:
                        if nb == 0 and s_ < 24: cl_(0, s_ + 8, 40)
                        if nb in (2, 3) and dq: dma(*dq.pop(0))
                    if nb == 1 and p < 3 and s_ >= 1: cl_(p+1, s_-1, 44)
                    if nb >= 2 and s_ >= 1 and epi: emit_epi(epi.pop(0))
                    if p == 3 and s_ == 24 and nb == 0: ln_loads(vm)
                if p < 3 and s_ == 31: cl_(p+1, 31, 44)
            assert not epi
        for p in range(4): pas(p)
        stamp(A, 2)
        A("s_nop 7"); A("s_nop 7")
        A(f"s_add_u32 s42, s41, {3*16384}"); A(f"s_add_u32 s43, s41, {3*16384+4096}")
        for it in epi_items(ACC[1], 42): emit_epi(it)
        stamp(A, 3)
        vm.wait('LN')
        A(f"s_branch {name}_ln")
    def ln_loads(vm):
        A("v_lshlrev_b32 v3, 5, v1")
        A(f"s_mov_b32 s18, {WS_MOD}")
        A("s_lshl_b32 s17, s2, 3"); A("s_lshl_b32 s19, s16, 1"); A("s_add_u32 s17, s17, s19"); A("s_lshl_b32 s19, s17, 10")
        vm.issue("buffer_load_dwordx4 v[24:27], v2, s[36:39], s19 offen")
        vm.issue("buffer_load_dwordx4 v[64:67], v2, s[36:39], s19 offen offset:1024")
        vm.issue("buffer_load_dwordx4 v[72:75], v3, s[32:35], s18 offen")
        vm.issue("buffer_load_dwordx4 v[76:79], v3, s[32:35], s18 offen offset:16")
        vm.issue("buffer_load_dwordx4 v[80:83], v3, s[32:35], s18 offen offset:2048")
        vm.issue("buffer_load_dwordx4 v[84:87], v3, s[32:35], s18 offen offset:2064", 'LN')
    A("s_cmp_eq_u32 s17, 1"); A(f"s_cbranch_scc1 {name}_v")
    body(True)
    A.label(f"{name}_v")
    body(False)
    A.label(f"{name}_ln")
    A("v_lshrrev_b32 v4, 1, v1"); A("v_lshlrev_b32 v4, 10, v4"); A("v_and_b32 v5, 1, v1"); A("v_lshlrev_b32 v5, 9, v5"); A("v_add_u32 v4, v4, v5")
    A("s_lshr_b32 s18, s17, 5"); A("s_lshl_b32 s18, s18, 15"); A("s_and_b32 s19, s17, 31"); A("s_lshl_b32 s19, s19, 4")
    A("s_add_u32 s18, s18, s19"); A(f"s_add_u32 s46, s18, {WS_H1}")
    for i in range(8): A(f"v_add_f32 v{80+i}, 1.0, v{80+i}")
    for r, src in ((0, 24), (1, 64)):
        unpack_bf16(A, src, 28, 4)
        layernorm_row(A, 28, 8, 80, 72, 18, 36)
        for i in range(4): A(f"v_cvt_pk_bf16_f32 v{88+4*r+i}, v{28+2*i}, v{29+2*i}")
        A(f"buffer_store_dwordx4 v[{88+4*r}:{91+4*r}], v4, s[32:35], s46 offen offset:{16*r}")
    if PROF: A("s_waitcnt vmcnt(0)")
    stamp(A, 4)
    stamp_out(A, 5, 37, 16, 0, 0)
    A.label(E); A("s_endpgm")
    return kernel_head(name) + A.text() + kernel_desc(name, 512, accum=256), f"; @launch kernel={name} grid=(256,1,1) block=(256,1,1) lds=131072\n"
```

```python
from gen_common import *
def gen_mod(name="mod_kernel"):
    A = Asm()
    A(f"s_cmp_ge_u32 s2, 176"); A(f"s_cbranch_scc1 {name}_end")
    A(f"s_cmp_ge_u32 s2, 48"); A(f"s_cbranch_scc1 {name}_pack")
    A(f"s_load_dwordx2 s[4:5], s[0:1], {KA['c']}")
    A(f"s_load_dwordx2 s[6:7], s[0:1], {KA['wmod']}")
    A(f"s_load_dwordx2 s[20:21], s[0:1], {KA['ws']}")
    A("s_waitcnt lgkmcnt(0)")
    srd(A, 8, 4, 1024); srd(A, 12, 6, 512*3072*2); srd(A, 16, 20, WS_SIZE)
    A("v_and_b32 v1, 7, v0"); A("v_lshrrev_b32 v2, 3, v0")
    A("v_lshlrev_b32 v3, 4, v1")
    A("s_mov_b32 s3, 6144"); A("v_mul_lo_u32 v4, v2, s3"); A("v_add_u32 v3, v3, v4")
    A("s_lshl_b32 s22, s2, 7")
    for i in range(16):
        A(f"s_add_u32 s23, s22, {32*i*6144}")
        A(f"buffer_load_dwordx4 v[{32+4*i}:{35+4*i}], v3, s[12:15], s23 offen")
    A("v_lshlrev_b32 v5, 2, v0")
    A("buffer_load_dword v6, v5, s[8:11], 0 offen")
    A("s_waitcnt vmcnt(0)")
    unpack_bf16(A, 6, 8, 1)
    for r in (8, 9):
        A(f"v_mul_f32 v10, {hx(-LOG2E)}, v{r}"); A("v_exp_f32 v10, v10"); A("s_nop 0")
        A("v_add_f32 v10, 1.0, v10"); A("v_rcp_f32 v10, v10"); A("s_nop 0")
        A(f"v_mul_f32 v{r}, v{r}, v10")
    round_bf16_inplace(A, 8, 2, 10)
    A("v_lshlrev_b32 v5, 3, v0")
    A("ds_write_b64 v5, v[8:9]")
    A("s_waitcnt lgkmcnt(0)"); A("s_barrier")
    A("v_lshlrev_b32 v5, 2, v2")
    for i in range(16): A(f"ds_read_b32 v{12+i}, v5 offset:{128*i}")
    A("s_waitcnt lgkmcnt(0)")
    for e in range(8): A(f"v_mov_b32 v{100+e}, 0")
    for i in range(16):
        unpack_bf16(A, 32+4*i, 108, 4)
        for e in range(8): A(f"v_fmac_f32 v{100+e}, v{108+e}, v{12+i}")
    A("s_barrier")
    A("v_lshlrev_b32 v5, 5, v0")
    A("v_add_u32 v5, 2048, v5")
    A("ds_write_b128 v5, v[100:103]"); A("ds_write_b128 v5, v[104:107] offset:16")
    A("s_waitcnt lgkmcnt(0)"); A("s_barrier")
    A("v_cmp_gt_u32 vcc, 64, v0"); A("s_and_saveexec_b64 s[24:25], vcc"); A(f"s_cbranch_execz {name}_end")
    A("v_lshlrev_b32 v5, 2, v0")
    for rg in range(32): A(f"ds_read_b32 v{32+rg}, v5 offset:{2048+rg*256}")
    A("s_waitcnt lgkmcnt(0)")
    for rg in range(1, 32): A(f"v_add_f32 v32, v32, v{32+rg}")
    A("v_cvt_pk_bf16_f32 v33, v32, v32"); A("v_lshlrev_b32 v33, 16, v33")
    A("s_lshl_b32 s22, s2, 8"); A(f"s_add_u32 s22, s22, {WS_MOD}")
    A("buffer_store_dword v33, v5, s[16:19], s22 offen")
    A("s_waitcnt vmcnt(0)")
    A("s_endpgm")
    A.label(f"{name}_pack")
    A(f"s_load_dwordx2 s[4:5], s[0:1], {KA['ckv']}")
    A(f"s_load_dwordx2 s[20:21], s[0:1], {KA['ws']}")
    A("v_lshrrev_b32 v1, 6, v0"); A("s_nop 0"); A("v_readfirstlane_b32 s16, v1"); A("v_and_b32 v1, 63, v0")
    A("s_sub_u32 s3, s2, 48"); A("s_lshl_b32 s3, s3, 2"); A("s_add_u32 s3, s3, s16")
    A("s_waitcnt lgkmcnt(0)")
    srd(A, 8, 4, 2048*512*2); srd(A, 16, 20, WS_SIZE)
    A("v_and_b32 v4, 31, v1"); A("v_lshrrev_b32 v5, 5, v1"); A("v_lshlrev_b32 v4, 10, v4"); A("v_lshlrev_b32 v5, 4, v5"); A("v_add_u32 v4, v4, v5")
    A("s_lshr_b32 s22, s3, 3"); A("s_lshl_b32 s22, s22, 15"); A("s_and_b32 s23, s3, 7"); A("s_lshl_b32 s24, s23, 7"); A("s_add_u32 s24, s24, s22")
    for i in range(4): A(f"buffer_load_dwordx4 v[{8+4*i}:{11+4*i}], v4, s[8:11], s24 offen offset:{32*i}")
    A("s_lshl_b32 s23, s23, 12"); A("s_add_u32 s22, s22, s23"); A(f"s_add_u32 s22, s22, {WS_CF}")
    A("v_lshlrev_b32 v2, 4, v1")
    for i in range(4):
        A(f"s_waitcnt vmcnt({3})")
        A(f"buffer_store_dwordx4 v[{8+4*i}:{11+4*i}], v2, s[16:19], s22 offen offset:{1024*i}")
    A.label(f"{name}_end"); A("s_endpgm")
    return kernel_head(name) + A.text() + kernel_desc(name, 128), f"; @launch kernel={name} grid=(176,1,1) block=(256,1,1) lds=12288\n"
```

```python
from gen_common import *
STC = os.environ.get("STC", "sc1")

def gemm(name, nwg, S, MR, NB, rowB, dmap, wkey, wstride, wbytes, C, R, ids, act, epi, lds, w_is_A=True, WD=2):
    A = Asm(); E = f"{name}_end"
    A(f"s_cmp_ge_u32 s2, {nwg}"); A(f"s_cbranch_scc1 {E}")
    stamp(A, 0)
    A(f"s_load_dwordx2 s[4:5], s[0:1], {KA[wkey]}")
    A(f"s_load_dwordx2 s[10:11], s[0:1], {KA['ws']}")
    A(f"s_load_dwordx2 s[12:13], s[0:1], {KA['out']}")
    A("v_lshrrev_b32 v1, 6, v0"); A("s_nop 0"); A("v_readfirstlane_b32 s16, v1"); A("v_and_b32 v1, 63, v0"); A("v_lshlrev_b32 v2, 4, v1")
    ids(A)
    A("s_waitcnt lgkmcnt(0)")
    srd(A, 24, 4, wbytes); srd(A, 32, 10, WS_SIZE); srd(A, 36, 12, 2048*512*2)
    RP, LP = 1024 // rowB, rowB // 16
    rows_chunk = 16 * S // C; nper = rows_chunk * rowB // 1024 // 4; spc = S // C
    lg = {4: 2, 8: 3, 16: 4}[LP]
    A(f"v_lshrrev_b32 v6, {lg}, v1"); A(f"v_and_b32 v5, {LP-1}, v1")
    if rowB == 256: A("v_lshlrev_b32 v7, 2, v6"); A("v_xor_b32 v5, v5, v7")
    if rowB == 128: A("v_lshlrev_b32 v7, 1, v6"); A("v_and_b32 v7, 4, v7"); A("v_xor_b32 v5, v5, v7")
    A("v_lshlrev_b32 v5, 4, v5")
    A(f"s_mul_i32 s18, s16, {nper*RP}"); A("v_add_u32 v7, s18, v6"); A(f"s_mov_b32 s18, {wstride}"); A("v_mul_lo_u32 v7, v7, s18")
    A("v_add_u32 v10, v7, v5")
    nv = min(4, nper)
    for j in range(1, nv): A(f"v_add_u32 v{10+j}, {j*(RP*wstride-1024)}, v10")
    vm = VM(A)
    def dma(c, j):
        if j % 4 == 0:
            A(f"s_mul_i32 s18, s16, {nper*1024}"); A(f"s_add_u32 s19, s20, {(c*rows_chunk + j*RP)*wstride}")
            A(f"s_add_u32 m0, s18, {c*rows_chunk*rowB + j*1024}"); A("s_nop 0")
        vm.issue(f"buffer_load_dwordx4 v{10+j%4}, s[24:27], s19 offen offset:{1024*(j%4)} lds", ('D', c))
    AB = 256
    nact = S * MR
    def aload(i):
        s_, mr = i // MR, i % MR; slot = i % R
        off = mr * act + s_ * 1024
        A(f"s_add_u32 s47, s21, {off & ~4095}")
        vm.issue(f"buffer_load_dwordx4 a[{4*slot}:{4*slot+3}], v2, s[32:35], s47 offen offset:{off & 4095}", ('A', i))
    for j in range(nper): dma(0, j)
    npre = min(R, nact)
    for i in range(min(8, npre)): aload(i)
    for j in range(nper): dma(1, j)
    win = 65536 // (16 * rowB); nwin = (S + win - 1) // win
    A("v_lshrrev_b32 v4, 4, v1"); A("v_bfe_u32 v5, v1, 2, 2"); A("v_and_b32 v6, 3, v1")
    A(f"v_lshrrev_b32 v7, 1, v4"); A(f"v_lshlrev_b32 v7, {2 if dmap else 3}, v7"); A("v_add_u32 v7, v7, v5"); A(f"v_mul_u32_u24 v7, {rowB}, v7")
    A("v_and_b32 v8, 1, v4"); A("v_lshlrev_b32 v8, 1, v8"); A("v_lshrrev_b32 v9, 1, v6"); A("v_add_u32 v8, v8, v9"); A("v_lshlrev_b32 v8, 4, v8")
    A("v_and_b32 v9, 1, v6"); A("v_lshlrev_b32 v9, 3, v9"); A("v_add_u32 v8, v8, v9"); A("v_add_u32 v7, v7, v8")
    if rowB == 128: A("v_lshrrev_b32 v5, 1, v5")
    TA = 16
    for nb in range(NB):
        if rowB == 64: A(f"v_mov_b32 v{TA+nb}, v7")
        else: A(f"v_xor_b32 v8, {nb}, v5"); A("v_lshlrev_b32 v8, 6, v8"); A(f"v_add_u32 v{TA+nb}, v7, v8")
        for wn in range(1, nwin): A(f"v_add_u32 v{TA+wn*NB+nb}, {wn*65536}, v{TA+nb}")
    sec = (8 if dmap else 4) * rowB
    WB = [32 + 4*NB*i for i in range(WD)]; ACC = 128
    lg_n = [0]; lg_tag = {}
    def wreads(s_, nb):
        ar = TA + (s_ // win) * NB + nb; off = (s_ % win) * 16 * rowB; r = WB[s_ % WD] + 4*nb
        A(f"ds_read_b64_tr_b16 v[{r}:{r+1}], v{ar} offset:{off}"); A(f"ds_read_b64_tr_b16 v[{r+2}:{r+3}], v{ar} offset:{off+sec}")
        lg_n[0] += 2; lg_tag[(s_, nb)] = lg_n[0]
    dq = [(c, j) for c in range(2, C) for j in range(nper)]
    nxt_a = min(8, npre)
    nrd = 2 * NB
    for s_ in range(S):
        if s_ == 0:
            vm.wait(('D', 0)); A("s_barrier"); stamp(A, 1)
            for q in range(WD - 1):
                for nb in range(NB): wreads(q, nb)
        if (s_ + WD - 1) % spc == 0 and s_ + WD - 1 < S:
            vm.wait(('D', (s_ + WD - 1) // spc)); A("s_barrier")
        vm.wait(*[('A', s_*MR + mr) for mr in range(MR)])
        k = 0
        for nb in range(NB):
            for mr in range(MR):
                if mr == 0:
                    A(f"s_waitcnt lgkmcnt({min(15, lg_n[0] - lg_tag[(s_, nb)])})")
                slot = (s_*MR + mr) % R
                w = f"v[{WB[s_%WD]+4*nb}:{WB[s_%WD]+4*nb+3}]"; x_ = f"a[{4*slot}:{4*slot+3}]"
                d0 = ACC + 16*(mr*NB + nb); d = f"v[{d0}:{d0+15}]"
                a_, b_ = (w, x_) if w_is_A else (x_, w)
                A(f"v_mfma_f32_32x32x16_bf16 {d}, {a_}, {b_}, {'0' if s_ == 0 else d}")
                if mr == MR - 1 and s_ + WD - 1 < S: wreads(s_ + WD - 1, nb)
                if k == 0 or (MR*NB >= 4 and k == 2):
                    lim = min(nact, max(npre, (s_ - 1) * MR + MR - 1 + R + 1 - 0) if s_ >= 1 else npre)
                    lim = min(nact, (s_ * MR) + R) if s_ >= 1 else min(nact, npre)
                    for _ in range(2 if nxt_a < npre else MR):
                        if nxt_a < lim: aload(nxt_a); nxt_a += 1
                if k == MR*NB - 1 and dq:
                    dma(*dq.pop(0))
                    if nper > spc and dq: dma(*dq.pop(0))
                k += 1
    assert nxt_a == nact and not dq, (nxt_a, nact, dq)
    stamp(A, 2)
    A("s_nop 7"); A("s_nop 7")
    epi(A, ACC, vm)
    if PROF: A("s_waitcnt vmcnt(0)")
    stamp(A, 3)
    stamp_out(A, 4, 37, 16, 0, 0)
    A.label(E); A("s_endpgm")
    return kernel_head(name) + A.text() + kernel_desc(name, 512, accum=256), f"; @launch kernel={name} grid=({nwg},1,1) block=(256,1,1) lds={lds}\n"

def gen_oproj():
    def ids(A):
        A("s_and_b32 s14, s2, 7"); A("s_bfe_u32 s15, s2, 0x20003"); A("s_lshr_b32 s17, s2, 5")
        A("s_lshl_b32 s20, s15, 20"); A("s_lshl_b32 s18, s17, 7"); A("s_add_u32 s20, s20, s18")
        A("s_lshl_b32 s21, s14, 3"); A("s_lshl_b32 s18, s16, 1"); A("s_add_u32 s21, s21, s18")
        A("s_mov_b32 s22, s21")
        A("s_lshl_b32 s21, s21, 18"); A("s_lshl_b32 s18, s15, 16"); A("s_add_u32 s21, s21, s18"); A(f"s_add_u32 s21, s21, {WS_CTX}")
    def epi(A, ACC, vm):
        A("s_barrier")
        A("v_and_b32 v4, 31, v1"); A("v_lshrrev_b32 v5, 5, v1"); A("v_mul_u32_u24 v4, 272, v4"); A("v_lshlrev_b32 v5, 4, v5"); A("v_add_u32 v4, v4, v5")
        A("s_mul_i32 s18, s16, 17408"); A("v_add_u32 v4, s18, v4")
        for mr in range(2):
            for nb in range(2):
                for a_ in range(4):
                    r = ACC + 16*(mr*2 + nb) + 4*a_
                    A(f"ds_write_b128 v4, v[{r}:{r+3}] offset:{mr*32*272 + nb*128 + a_*32}")
        A("v_lshrrev_b32 v4, 4, v1"); A("v_and_b32 v5, 15, v1"); A("v_lshlrev_b32 v5, 4, v5")
        A("v_mul_u32_u24 v6, 272, v4"); A("v_add_u32 v6, v6, v5"); A("v_add_u32 v6, s18, v6")
        A("v_lshlrev_b32 v7, 11, v4"); A("v_add_u32 v7, v7, v5")
        A("s_lshl_b32 s18, s15, 22"); A("s_lshl_b32 s19, s22, 16"); A("s_add_u32 s18, s18, s19"); A("s_lshl_b32 s19, s17, 8"); A("s_add_u32 s18, s18, s19")
        A(f"s_add_u32 s18, s18, {WS_PART}")
        A("s_waitcnt lgkmcnt(0)")
        for i in range(16): A(f"ds_read_b128 v[{32+4*i}:{35+4*i}], v6 offset:{i*4*272}")
        for i in range(16):
            A(f"s_waitcnt lgkmcnt({15-i})")
            A(f"buffer_store_dwordx4 v[{32+4*i}:{35+4*i}], v7, s[32:35], s18 offen {STC}")
            A("s_add_u32 s18, s18, 8192")
    return gemm("oproj_kernel", 256, 64, 2, 2, 128, True, 'wo', 1024, 4096*512*2, 8, 32, ids, 262144, epi, 131072)

def gen_red():
    name = "red_kernel"; A = Asm(); E = f"{name}_end"
    A(f"s_cmp_ge_u32 s2, 256"); A(f"s_cbranch_scc1 {E}")
    A(f"s_load_dwordx2 s[4:5], s[0:1], {KA['x']}"); A(f"s_load_dwordx2 s[10:11], s[0:1], {KA['ws']}")
    A("v_lshrrev_b32 v1, 6, v0"); A("s_nop 0"); A("v_readfirstlane_b32 s16, v1"); A("v_and_b32 v1, 63, v0")
    A("s_lshl_b32 s17, s2, 3"); A("s_add_u32 s17, s17, s16")
    A("s_waitcnt lgkmcnt(0)")
    srd(A, 20, 4, 2048*512*2); srd(A, 32, 10, WS_SIZE)
    A("v_lshlrev_b32 v2, 4, v1"); A("v_lshlrev_b32 v3, 5, v1")
    A("s_lshl_b32 s18, s17, 11"); A(f"s_add_u32 s18, s18, {WS_PART}")
    for ks in range(4):
        A(f"buffer_load_dwordx4 v[{32+8*ks}:{35+8*ks}], v3, s[32:35], s18 offen")
        A(f"buffer_load_dwordx4 v[{36+8*ks}:{39+8*ks}], v3, s[32:35], s18 offen offset:16")
        if ks < 3: A(f"s_add_u32 s18, s18, {2048*2048}")
    A("s_lshl_b32 s19, s17, 10")
    A("buffer_load_dwordx4 v[24:27], v2, s[20:23], s19 offen")
    A(f"s_mov_b32 s18, {WS_MOD + 2*2048}")
    A("buffer_load_dwordx4 v[64:67], v3, s[32:35], s18 offen"); A("buffer_load_dwordx4 v[68:71], v3, s[32:35], s18 offen offset:16")
    A("buffer_load_dwordx4 v[72:75], v3, s[32:35], s18 offen offset:2048"); A("buffer_load_dwordx4 v[76:79], v3, s[32:35], s18 offen offset:2064")
    A(f"s_mov_b32 s18, {WS_MOD + 4*2048}")
    A("buffer_load_dwordx4 v[80:83], v3, s[32:35], s18 offen"); A("buffer_load_dwordx4 v[84:87], v3, s[32:35], s18 offen offset:16")
    A("s_waitcnt vmcnt(0)")
    for i in range(8):
        A(f"v_add_f32 v{32+i}, v{32+i}, v{40+i}"); A(f"v_add_f32 v{48+i}, v{48+i}, v{56+i}")
    for i in range(8): A(f"v_add_f32 v{32+i}, v{32+i}, v{48+i}")
    round_bf16_inplace(A, 32, 8, 10)
    unpack_bf16(A, 24, 40, 4)
    for i in range(8): A(f"v_mul_f32 v{32+i}, v{32+i}, v{64+i}")
    round_bf16_inplace(A, 32, 8, 10)
    for i in range(8): A(f"v_add_f32 v{40+i}, v{40+i}, v{32+i}")
    for i in range(4): A(f"v_cvt_pk_bf16_f32 v{24+i}, v{40+2*i}, v{41+2*i}")
    A(f"s_add_u32 s19, s19, {WS_X1}")
    A("buffer_store_dwordx4 v[24:27], v2, s[32:35], s19 offen")
    unpack_bf16(A, 24, 40, 4)
    for i in range(8): A(f"v_add_f32 v{80+i}, 1.0, v{80+i}")
    layernorm_row(A, 40, 8, 80, 72, 18, 36)
    for i in range(4): A(f"v_cvt_pk_bf16_f32 v{28+i}, v{40+2*i}, v{41+2*i}")
    A("v_lshrrev_b32 v4, 1, v1"); A("v_lshlrev_b32 v4, 10, v4"); A("v_and_b32 v5, 1, v1"); A("v_lshlrev_b32 v5, 9, v5"); A("v_add_u32 v4, v4, v5")
    A("s_lshr_b32 s18, s17, 5"); A("s_lshl_b32 s18, s18, 15"); A("s_and_b32 s19, s17, 31"); A("s_lshl_b32 s19, s19, 4")
    A("s_add_u32 s18, s18, s19"); A(f"s_add_u32 s18, s18, {WS_H2}")
    A("buffer_store_dwordx4 v[28:31], v4, s[32:35], s18 offen")
    A.label(E); A("s_endpgm")
    return kernel_head(name) + A.text() + kernel_desc(name, 128), f"; @launch kernel={name} grid=(256,1,1) block=(512,1,1) lds=0\n"

def gen_mlp1():
    def ids(A):
        A("s_and_b32 s14, s2, 15"); A("s_lshr_b32 s17, s2, 4")
        A("s_lshl_b32 s20, s17, 8")
        A("s_lshl_b32 s22, s14, 2"); A("s_add_u32 s22, s22, s16")
        A("s_lshl_b32 s21, s22, 15"); A(f"s_add_u32 s21, s21, {WS_H2}")
    def epi(A, ACC, vm):
        A(f"s_mul_i32 s18, s22, {112*1024}"); A("s_lshl_b32 s19, s17, 13"); A("s_add_u32 s18, s18, s19"); A(f"s_add_u32 s18, s18, {WS_HID}"); A("s_add_u32 s19, s18, 4096")
        for nb in range(4):
            a0 = ACC + 16*nb
            for i in range(16): A(f"v_mul_f32 v{32+i}, {hx(-LOG2E)}, v{a0+i}")
            for i in range(16): A(f"v_exp_f32 v{32+i}, v{32+i}")
            for i in range(16): A(f"v_add_f32 v{32+i}, 1.0, v{32+i}")
            for i in range(16): A(f"v_rcp_f32 v{32+i}, v{32+i}")
            for i in range(16): A(f"v_mul_f32 v{a0+i}, v{a0+i}, v{32+i}")
            for i in range(8): A(f"v_cvt_pk_bf16_f32 v{a0+i}, v{a0+2*i}, v{a0+2*i+1}")
            for t in range(2):
                f = 2*nb + t
                A(f"buffer_store_dwordx4 v[{a0+4*t}:{a0+4*t+3}], v2, s[32:35], s{18 + f//4} offen offset:{(f%4)*1024} {STC}")
    return gemm("mlp1_kernel", 224, 32, 1, 4, 256, False, 'w1', 3584, 512*1792*2, 4, 32, ids, 0, epi, 131072)

def gen_mlp2():
    def ids(A):
        A("s_and_b32 s14, s2, 15"); A("s_lshr_b32 s17, s2, 4")
        A("s_lshl_b32 s20, s17, 6")
        A("s_lshl_b32 s22, s14, 2"); A("s_add_u32 s22, s22, s16")
        A(f"s_mul_i32 s21, s22, {112*1024}"); A(f"s_add_u32 s21, s21, {WS_HID}")
    def epi(A, ACC, vm):
        A("v_and_b32 v4, 31, v1"); A("v_lshrrev_b32 v5, 5, v1")
        A("v_lshlrev_b32 v6, 10, v4"); A("v_lshlrev_b32 v7, 3, v5"); A("v_add_u32 v6, v6, v7")
        A("s_lshl_b32 s18, s22, 15"); A("s_lshl_b32 s19, s17, 6"); A("s_add_u32 s18, s18, s19")
        A(f"s_add_u32 s19, s18, {WS_X1}")
        for a_ in range(4): A(f"buffer_load_dwordx2 v[{32+2*a_}:{33+2*a_}], v6, s[32:35], s19 offen offset:{16*a_}")
        A("v_lshlrev_b32 v7, 4, v5"); A("s_lshl_b32 s19, s17, 7"); A(f"s_add_u32 s19, s19, {WS_MOD + 5*2048}")
        for a_ in range(4): A(f"buffer_load_dwordx4 v[{48+4*a_}:{51+4*a_}], v7, s[32:35], s19 offen offset:{32*a_}")
        A("s_waitcnt vmcnt(0)")
        round_bf16_inplace(A, ACC, 16, 10)
        for i in range(16): A(f"v_mul_f32 v{ACC+i}, v{ACC+i}, v{48+i}")
        round_bf16_inplace(A, ACC, 16, 10)
        unpack_bf16(A, 32, 64, 8)
        for i in range(16): A(f"v_add_f32 v{ACC+i}, v{ACC+i}, v{64+i}")
        for i in range(8): A(f"v_cvt_pk_bf16_f32 v{32+i}, v{ACC+2*i}, v{ACC+2*i+1}")
        for a_ in range(4): A(f"buffer_store_dwordx2 v[{32+2*a_}:{33+2*a_}], v6, s[36:39], s18 offen offset:{16*a_}")
    return gemm("mlp2_kernel", 256, 112, 1, 1, 64, True, 'w2', 1024, 1792*512*2, 7, 32, ids, 0, epi, 114688, WD=6)

def gen_tail():
    return [gen_oproj(), gen_red(), gen_mlp1(), gen_mlp2()]
```

```python
from gen_common import *
STC = os.environ.get("STC_AT", "sc1")
class VM2:
    def __init__(self, A): self.A = A; self.n = [0, 0]; self.tag = {}; self.done = [0, 0]
    def issue(self, ins, tag=None, loader_only=False):
        self.A(ins); self.n[0] += 1
        if not loader_only: self.n[1] += 1
        if tag is not None: self.tag[tag] = (self.n[0], None if loader_only else self.n[1])
    def wait(self, *tags):
        cs = []; need = False
        for vi in range(2):
            l = [self.tag[t][vi] for t in tags if self.tag[t][vi] is not None]
            if l:
                last = max(l); cs.append(self.n[vi] - last)
                if last > self.done[vi]: need = True
        if not need: return
        c = min(63, min(cs))
        for vi in range(2): self.done[vi] = max(self.done[vi], self.n[vi] - c)
        self.A(f"s_waitcnt vmcnt({c})")

def gen_attn(name="attn_kernel"):
    A = Asm()
    E = f"{name}_end"
    O, QF, SA, SB, NM, CM, KB, VB = 32, 96, 128, 144, 160, 176, 192, 224
    vAc, vAn, vL, vNm, vZ, vT = 4, 5, 6, 7, 8, 9
    BIG = 2.0 ** 100
    A(f"s_cmp_ge_u32 s2, 256"); A(f"s_cbranch_scc1 {E}")
    if os.environ.get("SPF", "0") == "1" and os.environ.get("SPFA", "1") == "1": code_pf(A, "attn_kernel", "attn_kernel_end", 0, 9, 1, 252, 70, True)
    stamp(A, 0)
    A(f"s_load_dwordx2 s[4:5], s[0:1], {KA['wq']}")
    A(f"s_load_dwordx2 s[10:11], s[0:1], {KA['ws']}")
    A(f"s_load_dwordx2 s[58:59], s[0:1], {KA['wo']}"); A(f"s_load_dwordx2 s[60:61], s[0:1], {KA['w1']}"); A(f"s_load_dwordx2 s[62:63], s[0:1], {KA['w2']}")
    A("s_and_b32 s14, s2, 7"); A("s_lshl_b32 s14, s14, 2")
    A("s_lshr_b32 s15, s2, 3"); A("s_and_b32 s15, s15, 3"); A("s_add_u32 s14, s14, s15")
    A("s_lshr_b32 s15, s2, 5")
    A("v_lshrrev_b32 v1, 6, v0"); A("s_nop 0"); A("v_readfirstlane_b32 s16, v1")
    A("v_and_b32 v1, 63, v0"); A("v_lshlrev_b32 v2, 4, v1")
    A("s_lshr_b32 s17, s16, 2")
    A("s_and_b32 s18, s16, 3")
    A("s_sub_u32 s19, 15, s15"); A("s_cmp_eq_u32 s17, 0"); A("s_cselect_b32 s19, s15, s19")
    A("s_lshl_b32 s40, s19, 1"); A("s_add_u32 s40, s40, 2")
    A("s_lshl_b32 s41, s15, 1"); A("s_sub_u32 s41, 32, s41")
    A("s_lshl_b32 s42, s19, 2"); A("s_add_u32 s42, s42, s18")
    A("s_waitcnt lgkmcnt(0)")
    srd(A, 24, 4, 512*4096*2)
    srd(A, 32, 10, WS_SIZE)
    A("v_lshrrev_b32 v10, 4, v1")
    A("v_and_b32 v11, 15, v1"); A("v_lshlrev_b32 v12, 2, v10"); A("v_xor_b32 v11, v11, v12"); A("v_lshlrev_b32 v11, 4, v11")
    A("s_lshl_b32 s20, s16, 4"); A("v_add_u32 v12, s20, v10"); A("v_lshlrev_b32 v12, 13, v12")
    A("s_lshl_b32 s20, s14, 8"); A("v_add_u32 v12, s20, v12"); A("v_add_u32 v24, v12, v11")
    for j in range(1, 4): A(f"v_add_u32 v{24+j}, {j*(4*8192-1024)}, v24")
    A("s_lshl_b32 s43, s42, 15"); A(f"s_add_u32 s43, s43, {WS_H1}")
    A("s_lshl_b32 s44, s14, 20"); A(f"s_add_u32 s44, s44, {WS_KV}")
    A("s_lshl_b32 s20, s18, 13"); A("s_add_u32 s45, s44, s20")
    A("s_lshl_b32 s46, s18, 13")
    vm = VM2(A)
    def wdma(c):
        A(f"s_lshl_b32 s20, s16, 12"); A(f"s_mov_b32 s21, {128*c*8192}"); A(f"s_add_u32 m0, s20, {c*32768}"); A("s_nop 0")
        for j in range(4): vm.issue(f"buffer_load_dwordx4 v{24+j}, s[24:27], s21 offen offset:{1024*j} lds", ('W', c))
    def hload(s_):
        A(f"s_add_u32 s47, s43, {(s_//4)*4096}")
        vm.issue(f"buffer_load_dwordx4 v[{192+4*(s_%16)}:{195+4*(s_%16)}], v2, s[32:35], s47 offen offset:{1024*(s_%4)}", ('H', s_))
    def tile_dma_static(t):
        L = A.new("td")
        A("s_cmp_lg_u32 s17, 0"); A(f"s_cbranch_scc1 {L}")
        slot = (t + 4) % 5
        for half in range(2):
            A(f"s_add_u32 s47, s45, {t*32768 + half*4096}"); A(f"s_add_u32 m0, s46, {slot*32768 + half*4096}"); A("s_nop 0")
            for i in range(4): vm.issue(f"buffer_load_dwordx4 v2, s[32:35], s47 offen offset:{1024*i} lds", ('T', t), loader_only=True)
        A.label(L)
    wdma(0)
    for s_ in range(8): hload(s_)
    wdma(1)
    A("v_lshrrev_b32 v10, 4, v1"); A("v_bfe_u32 v11, v1, 2, 2"); A("v_and_b32 v12, 3, v1")
    A("v_lshrrev_b32 v13, 1, v10"); A("v_lshlrev_b32 v13, 3, v13"); A("v_add_u32 v13, v13, v11"); A("v_lshlrev_b32 v13, 8, v13")
    A("v_and_b32 v14, 1, v10"); A("v_lshlrev_b32 v14, 1, v14"); A("v_lshrrev_b32 v15, 1, v12"); A("v_add_u32 v14, v14, v15"); A("v_lshlrev_b32 v14, 4, v14")
    A("v_and_b32 v15, 1, v12"); A("v_lshlrev_b32 v15, 3, v15"); A("v_add_u32 v14, v14, v15"); A("v_add_u32 v13, v13, v14")
    for nb in range(4):
        A(f"v_xor_b32 v14, {nb}, v11"); A("v_lshlrev_b32 v14, 6, v14"); A(f"v_add_u32 v{16+nb}, v13, v14")
        A(f"v_add_u32 v{20+nb}, 0x10000, v{16+nb}")
    WB = [96, 112]; QA = 128
    def wreads(s_, setb, nb):
        ar = (16 if s_ < 16 else 20) + nb; off = (s_ % 16) * 4096; r = WB[setb] + 4*nb
        return [f"ds_read_b64_tr_b16 v[{r}:{r+1}], v{ar} offset:{off}", f"ds_read_b64_tr_b16 v[{r+2}:{r+3}], v{ar} offset:{off+1024}"]
    for s_ in range(32):
        if s_ == 0:
            vm.wait(('W', 0)); A("s_barrier")
            stamp(A, 1)
            for nb in range(4):
                for l in wreads(0, 0, nb): A(l)
        nxt = s_ + 1
        if nxt % 8 == 0 and nxt < 32:
            vm.wait(('W', nxt // 8)); A("s_barrier")
            if nxt == 16: tile_dma_static(1)
            if nxt == 24: tile_dma_static(2)
        vm.wait(('H', s_))
        for nb in range(4):
            A(f"s_waitcnt lgkmcnt({6-2*nb if s_ == 31 else 6})")
            w = f"v[{WB[s_%2]+4*nb}:{WB[s_%2]+4*nb+3}]"; d = f"v[{QA+16*nb}:{QA+16*nb+15}]"
            A(f"v_mfma_f32_32x32x16_bf16 {d}, {w}, v[{192+4*(s_%16)}:{195+4*(s_%16)}], {'0' if s_ == 0 else d}")
            if 8 <= s_ < 24 and nb == 3:
                for i in range(4): A(f"v_mov_b32 v{O+4*(s_-8)+i}, 0")
            if s_ < 31:
                for l in wreads(s_+1, (s_+1) % 2, nb): A(l)
            if nb == 0 and s_ < 8: hload(s_ + 8)
            if nb == 0 and 1 <= s_ <= 16: hload(s_ + 15)
            if nb == 2 and s_ == 0: wdma(2)
            if nb == 2 and s_ == 2: wdma(3)
            if nb == 2 and s_ == 4: tile_dma_static(0)
    stamp(A, 2)
    vm.wait(('T', 0)); A("s_barrier")
    tile_dma_static(3)
    A(f"v_add_u32 v{vAc}, {4*32768}, v2")
    A(f"v_mov_b32 v{vAn}, v2")
    for f in range(8): A(f"ds_read_b128 v[{KB+4*f}:{KB+4*f+3}], v{vAc} offset:{f*1024}")
    A(f"s_mov_b32 s20, {hx(LOG2E / 128 ** 0.5)}"); A("s_mov_b32 s21, s20")
    A("v_and_b32 v10, 31, v1"); A("v_lshrrev_b32 v11, 5, v1"); A("v_lshlrev_b32 v11, 2, v11"); A("v_sub_u32 v10, v10, v11")
    A("s_lshl_b32 s22, s42, 5"); A("v_add_u32 v10, s22, v10"); A("v_cvt_f32_i32 v10, v10"); A("v_add_f32 v10, 0.5, v10")
    A(f"v_mul_f32 v{vZ}, {hx(BIG)}, v10")
    A(f"v_mov_b32 v{vL}, 0")
    for i in range(32):
        A(f"v_pk_mul_f32 v[{QA+2*i}:{QA+2*i+1}], v[{QA+2*i}:{QA+2*i+1}], s[20:21]")
    for i in range(32): A(f"v_cvt_pk_bf16_f32 v{QF+i}, v{QA+2*i}, v{QA+2*i+1}")
    def s_mfma(dst, f, c):
        d = f"v[{dst}:{dst+15}]"
        return f"v_mfma_f32_32x32x16_bf16 {d}, v[{KB+4*f}:{KB+4*f+3}], v[{QF+4*f}:{QF+4*f+3}], {c if f == 0 else d}"
    def pv_mfma(P, i, first=False):
        t, db = i // 4, i % 4
        d = f"v[{O+16*db}:{O+16*db+15}]"
        return f"v_mfma_f32_32x32x16_bf16 {d}, v[{VB+4*i}:{VB+4*i+3}], v[{P+4*t}:{P+4*t+3}], {'0' if first else d}"
    def cm_ops(nmreg):
        ops = []
        for r in range(16):
            k = 8*(r//4) + r % 4
            ops.append(f"v_add_f32 v{CM+r}, {hx(-k*BIG)}, v{vZ}" if k else f"v_mov_b32 v{CM}, v{vZ}")
            ops.append(f"v_min_f32 v{CM+r}, v{CM+r}, v{nmreg}")
        return ops
    zdec = f"v_add_f32 v{vZ}, {hx(-32*BIG)}, v{vZ}"
    A("s_waitcnt lgkmcnt(0)")
    for f in range(8):
        A(s_mfma(SA, f, "0"))
        if f > 0: A(f"ds_read_b128 v[{KB+4*(f-1)}:{KB+4*(f-1)+3}], v{vAc} offset:{16384+(f-1)*1024}")
    A(f"ds_read_b128 v[{KB+28}:{KB+31}], v{vAc} offset:{16384+7*1024}")
    A("s_nop 7"); A("s_nop 3")
    A(f"v_mov_b32 v10, v{SA}"); A(f"v_mov_b32 v11, v{SA}"); A("s_nop 1")
    A("v_permlane32_swap_b32 v10, v11")
    A("s_nop 1")
    A(f"v_sub_f32 v{vNm}, 0, v10")
    L0a, L0b = A.new("s0"), A.new("s0")
    A("s_cmp_eq_u32 s42, 0"); A(f"s_cbranch_scc1 {L0a}")
    for r in range(16): A(f"v_add_f32 v{SA+r}, v{SA+r}, v{vNm}")
    A(f"s_branch {L0b}")
    A.label(L0a)
    for l in cm_ops(vNm): A(l)
    for r in range(16): A(f"v_add_f32 v{SA+r}, v{SA+r}, v{CM+r}")
    A.label(L0b)
    for r in range(16): A(f"v_mov_b32 v{NM+r}, v{vNm}")
    A(zdec)
    def exp_(S, r): return f"v_exp_f32 v{S+r}, v{S+r}"
    def add_(S, r): return f"v_add_f32 v{vL}, v{vL}, v{S+r}"
    def cvt_(S, i): return f"v_cvt_pk_bf16_f32 v{S+i}, v{S+2*i}, v{S+2*i+1}"
    for r in range(6): A(exp_(SA, r))
    A("s_nop 0")
    for r in range(5): A(add_(SA, r))
    for i in range(2): A(cvt_(SA, i))
    A("s_mov_b32 s48, 0"); A(f"s_mov_b32 s49, {3*32768}"); A(f"s_add_u32 s50, s45, {4*32768}"); A("s_mov_b32 s51, 0")
    stamp(A, 3)

    def xsync():
        L1, L2, L3 = A.new("x"), A.new("x"), A.new("x")
        ops = []
        ops.append(f"s_add_u32 s52, s48, 3\ns_cmp_lt_u32 s52, s41\ns_cbranch_scc1 {L1}\ns_waitcnt vmcnt(0)\n{L1}:\ns_waitcnt vmcnt(16)\ns_barrier")
        return ops
    def dma_next():
        L = A.new("dn")
        s = [f"s_add_u32 s52, s48, 4", "s_cmp_lt_u32 s52, s41", "s_cselect_b32 s52, 1, 0", "s_andn2_b32 s52, s52, s17", "s_cmp_eq_u32 s52, 0", f"s_cbranch_scc1 {L}"]
        for half in range(2):
            s += [f"s_add_u32 s47, s50, {half*4096}", f"s_add_u32 s53, s49, {half*4096}", "s_add_u32 m0, s46, s53", "s_nop 0"]
            for i in range(4): s.append(f"buffer_load_dwordx4 v2, s[32:35], s47 offen offset:{1024*i} lds")
        s.append(f"{L}:")
        return s
    def adv_state():
        return [f"s_add_u32 s48, s48, 1", "s_add_u32 s50, s50, 32768",
                "s_add_u32 s49, s49, 32768", "s_cmp_eq_u32 s49, 163840", "s_cselect_b32 s49, 0, s49",
                "s_add_u32 s51, s51, 32768", "s_cmp_eq_u32 s51, 163840", "s_cselect_b32 s51, 0, s51"]
    def emit(l):
        for x in l.split("\n"):
            if x.endswith(":"): A.label(x[:-1])
            else: A(x)
    def body(masked, final, loader):
        sm = [[] for _ in range(32)]
        for r in range(6, 16): sm[r-6].append(exp_(SA, r))
        for r in range(5, 16): sm[r-5].append(add_(SA, r))
        for i in range(2, 8): sm[2*i-4].append(cvt_(SA, i))
        for r in range(16): sm[10+r].append(exp_(SB, r))
        for r in range(16): sm[11+r].append(add_(SB, r))
        for i in range(8): sm[12+2*i].append(cvt_(SB, i))
        if not final:
            for r in range(6): sm[26+r].append(exp_(SA, r))
            for r in range(5): sm[27+r].append(add_(SA, r))
            for i in range(2): sm[28+2*i].append(cvt_(SA, i))
        for g in range(32):
            adds = [x for x in sm[g] if x.startswith("v_add")]; cv = [x for x in sm[g] if x.startswith("v_cvt")]; ex = [x for x in sm[g] if x.startswith("v_exp")]
            sm[g] = adds + cv + ex
        rd = [None] * 32
        def reads(g0, dst, areg, off):
            for k in range(8): rd[g0 + k] = f"ds_read_b128 v[{dst+4*k}:{dst+4*k+3}], v{areg} offset:{off+k*1024}"
        reads(0, VB, vAc, 8192)
        if not final: reads(8, KB, vAn, 0)
        reads(16, VB, vAc, 16384+8192)
        if not final: reads(24, KB, vAn, 16384)
        mk = [[] for _ in range(32)]
        if masked and not final:
            ops = [zdec] + cm_ops(vNm)
            for k, o in enumerate(ops): mk[9 + min(6, k // 5)].append(o)
            ops = [zdec] + cm_ops(vNm)
            for k, o in enumerate(ops): mk[24 + min(7, k // 5)].append(o)
        sc = [[] for _ in range(32)]
        sc[25] += [f"v_mov_b32 v{vAc}, v{vAn}", "s_add_u32 s51, s51, 32768"]
        sc[27] += ["s_cmp_eq_u32 s51, 163840", "s_cselect_b32 s51, 0, s51"]
        if loader:
            sc[29] += ["s_add_u32 s50, s50, 32768", "s_add_u32 s49, s49, 32768"]
            sc[30] += ["s_cmp_eq_u32 s49, 163840", "s_cselect_b32 s49, 0, s49"]
        sc[29] += ["s_add_u32 s48, s48, 1"]
        n = [8]; tag = {('in', f): f + 1 for f in range(8)}
        def need(g):
            src = g - 8
            return tag[('in', g)] if src < 0 else tag[('g', src)]
        for g in range(32):
            grp, k = g // 8, g % 8
            skip = final and grp == 2
            if not skip:
                if k % 2 == 0:
                    A(f"s_waitcnt lgkmcnt({n[0] - need(g + 1)})")
                if masked and g == 16: A("s_nop 1")
                if grp == 0: A(s_mfma(SB, k, f"v[{CM}:{CM+15}]" if masked else f"v[{NM}:{NM+15}]"))
                elif grp == 1: A(pv_mfma(SA, k))
                elif grp == 2: A(s_mfma(SA, k, f"v[{CM}:{CM+15}]" if masked else f"v[{NM}:{NM+15}]"))
                else: A(pv_mfma(SB, k))
            elif k == 0: A("s_nop 7")
            if g == 8:
                if loader:
                    L1 = A.new("x")
                    A("s_add_u32 s52, s48, 3"); A("s_cmp_lt_u32 s52, s41"); A(f"s_cbranch_scc1 {L1}"); A("s_waitcnt vmcnt(0)"); A.label(L1); A("s_waitcnt vmcnt(16)")
                A("s_barrier")
            if rd[g] is not None:
                if not (os.environ.get("NOLDS") and (os.environ.get("NOLDS") == "1" or g % 2)): A(rd[g])
                n[0] += 1; tag[('g', g)] = n[0]
            for l in sm[g]:
                if os.environ.get("NOVALU") and (os.environ.get("NOVALU") == "1" or os.environ.get("NOVALU") in l): continue
                A(l)
            if skip: A("s_nop 0")
            for l in mk[g]: A(l)
            for l in sc[g]: A(l)
            if loader and g in (10, 14):
                half = (g - 10) // 4
                L = A.new("dn")
                A("s_add_u32 s52, s48, 4"); A("s_cmp_lt_u32 s52, s41"); A(f"s_cbranch_scc0 {L}")
                A(f"s_add_u32 s47, s50, {half*4096}"); A(f"s_add_u32 s53, s49, {half*4096}"); A("s_add_u32 m0, s46, s53"); A("s_nop 0")
                for i in range(4): A(f"buffer_load_dwordx4 v2, s[32:35], s47 offen offset:{1024*i} lds")
                A.label(L)
            if g == 31: A(f"v_add_u32 v{vAn}, s51, v2")
    def mainloops(loader):
        LN_, LM_ = A.new("bn"), A.new("bm")
        A("s_add_i32 s54, s40, -3")
        A("s_cmp_ge_i32 s48, s54"); A(f"s_cbranch_scc1 {LN_}_done")
        A(".p2align 3")
        A.label(LN_)
        body(False, False, loader)
        A("s_cmp_lt_i32 s48, s54"); A(f"s_cbranch_scc1 {LN_}")
        A.label(f"{LN_}_done")
        A("s_lshl_b32 s52, s48, 6"); A("v_cvt_f32_u32 v10, s52"); A(f"v_mul_f32 v10, {hx(BIG)}, v10"); A(f"v_sub_f32 v{vZ}, v{vZ}, v10")
        for l in cm_ops(vNm): A(l)
        A("s_add_u32 s54, s40, -1")
        A.label(LM_)
        body(True, False, loader)
        A("s_cmp_lt_u32 s48, s54"); A(f"s_cbranch_scc1 {LM_}")
        body(True, True, loader)
    A("s_cmp_lg_u32 s17, 0"); A(f"s_cbranch_scc1 {name}_hi")
    mainloops(True)
    A(f"s_branch {name}_epi")
    A.label(f"{name}_hi")
    if os.environ.get("PRIO", "0") == "1": A("s_setprio 1")
    mainloops(False)
    A.label(f"{name}_epi")
    stamp(A, 4)
    A(f"v_mov_b32 v10, v{vL}"); A(f"v_mov_b32 v11, v{vL}"); A("s_nop 1")
    A("v_permlane32_swap_b32 v10, v11"); A("s_nop 1")
    A(f"v_add_f32 v{vL}, v10, v11")
    A(f"v_mov_b32 v12, {hx(2.0**80)}")
    A(f"v_cmp_nlt_f32 vcc, v{vL}, v12")
    A(f"s_cbranch_vccnz {name}_fb")
    A.label(f"{name}_fin")
    A(f"v_rcp_f32 v10, v{vL}"); A("s_nop 7"); A("s_nop 3")
    for i in range(64): A(f"v_mul_f32 v{O+i}, v{O+i}, v10")
    A("s_lshl_b32 s20, s42, 18"); A("s_lshl_b32 s21, s14, 13"); A("s_add_u32 s20, s20, s21"); A(f"s_add_u32 s20, s20, {WS_CTX}"); A("s_add_u32 s21, s20, 4096")
    for db in range(4):
        a0 = O + 16*db
        for i in range(8): A(f"v_cvt_pk_bf16_f32 v{a0+i}, v{a0+2*i}, v{a0+2*i+1}")
        for t in range(2):
            f = 2*db + t
            A(f"buffer_store_dwordx4 v[{a0+4*t}:{a0+4*t+3}], v2, s[32:35], s{20 + f//4} offen offset:{(f%4)*1024} {STC}")
    LL = A.new("ll")
    PF = os.environ.get("PF", "1") == "1"
    def prefetch():
        A("s_cmp_eq_u32 s18, 2"); A("s_cselect_b32 s58, s60, s58"); A("s_cselect_b32 s59, s61, s59")
        A("s_cmp_eq_u32 s18, 3"); A("s_cselect_b32 s58, s62, s58"); A("s_cselect_b32 s59, s63, s59")
        srd(A, 24, 58, 4096*512*2)
        A("s_and_b32 s20, s2, 7"); A("s_lshl_b32 s20, s20, 19"); A("s_lshr_b32 s21, s2, 3"); A("s_lshl_b32 s21, s21, 14"); A("s_add_u32 s20, s20, s21")
        A("s_lshl_b32 s21, s18, 13"); A("s_add_u32 s20, s20, s21")
        A(f"s_mul_i32 s21, s2, 7168")
        A("s_cmp_ge_u32 s18, 2"); A("s_cselect_b32 s20, s21, s20"); A(f"s_cselect_b32 s26, {512*1792*2}, s26")
        A("s_add_u32 s21, s20, 4096")
        for i in range(8): A(f"buffer_load_dwordx4 v[{32+4*i}:{35+4*i}], v2, s[24:27], s{20 + i//4} offen offset:{1024*(i%4)}")
        A("v_lshrrev_b32 v64, 4, v2"); A("s_lshl_b32 s20, s18, 6"); A("v_add_u32 v64, s20, v64")
        code_pf(A, "tail_kernel", "tail_kernel_end", 64, 8, 3, 66, 20)
    if PF:
        Lp = A.new("pf")
        A("s_mov_b32 s64, 0")
        A("s_cmp_lg_u32 s17, 0"); A(f"s_cbranch_scc1 {name}_end2")
        A("s_add_u32 s52, s48, 4"); A("s_cmp_gt_u32 s52, s41"); A(f"s_cbranch_scc1 {Lp}")
        prefetch(); A("s_mov_b32 s64, 1")
        A.label(Lp)
    A("s_cmp_ge_u32 s48, s41"); A(f"s_cbranch_scc1 {name}_out")
    A.label(LL)
    for l in xsync(): emit(l)
    for l in dma_next(): emit(l)
    for l in adv_state(): A(l)
    A("s_cmp_lt_u32 s48, s41"); A(f"s_cbranch_scc1 {LL}")
    A.label(f"{name}_out")
    if PF:
        A("s_cmp_lg_u32 s64, 0"); A(f"s_cbranch_scc1 {name}_end2")
        prefetch()
        A.label(f"{name}_end2")
    if PROF: A("s_waitcnt vmcnt(0)")
    stamp(A, 5)
    stamp_all(A, 2, 16, 4)
    stamp_out(A, 6, int(os.environ.get("PWG", "37")), 16, 4, 0)
    stamp_out(A, 6, int(os.environ.get("PWG", "37")), 16, 0, 8)
    A("s_endpgm")
    A.label(f"{name}_fb")
    FL = A.new("fl")
    for i in range(64): A(f"v_mov_b32 v{O+i}, 0")
    A(f"v_mov_b32 v{vL}, 0"); A(f"v_mov_b32 v{vNm}, {hx(-3.0e38)}")
    A("v_and_b32 v10, 31, v1"); A("v_lshrrev_b32 v11, 5, v1"); A("v_lshlrev_b32 v11, 2, v11"); A("v_sub_u32 v10, v10, v11")
    A("s_lshl_b32 s20, s42, 5"); A("v_add_u32 v10, s20, v10"); A("v_cvt_f32_i32 v10, v10"); A("v_add_f32 v10, 0.5, v10")
    A(f"v_mul_f32 v{vZ}, {hx(BIG)}, v10")
    A("v_mov_b32 v12, 0")
    A("s_mov_b32 s55, 0"); A("s_mov_b32 s56, s44")
    A.label(FL)
    for q in range(4):
        A(f"s_add_u32 s57, s56, {q*4096}")
        for i in range(4):
            f = 4*q + i; dst = (KB + 4*f) if f < 8 else (VB + 4*(f-8))
            A(f"buffer_load_dwordx4 v[{dst}:{dst+3}], v2, s[32:35], s57 offen offset:{1024*i}")
    for l in cm_ops(12): A(l)
    A(zdec)
    A("s_waitcnt vmcnt(0)")
    for f in range(8): A(s_mfma(SA, f, f"v[{CM}:{CM+15}]"))
    A("s_nop 7"); A("s_nop 7")
    A(f"v_max_f32 v10, v{SA}, v{SA+1}")
    for r in range(2, 16): A(f"v_max_f32 v10, v10, v{SA+r}")
    A("v_mov_b32 v11, v10"); A("s_nop 1"); A("v_permlane32_swap_b32 v10, v11"); A("s_nop 1")
    A("v_max_f32 v10, v10, v11"); A(f"v_max_f32 v10, v10, v{vNm}")
    A(f"v_sub_f32 v11, v{vNm}, v10"); A("v_exp_f32 v11, v11"); A(f"v_mov_b32 v{vNm}, v10")
    for r in range(16): A(f"v_sub_f32 v{SA+r}, v{SA+r}, v10")
    for r in range(16): A(exp_(SA, r))
    A("s_nop 0")
    A(f"v_mul_f32 v{vL}, v{vL}, v11")
    for r in range(16): A(add_(SA, r))
    for i in range(8): A(cvt_(SA, i))
    for i in range(64): A(f"v_mul_f32 v{O+i}, v{O+i}, v11")
    A("s_nop 1")
    for k in range(8): A(pv_mfma(SA, k))
    A("s_nop 7"); A("s_nop 7")
    A("s_add_u32 s56, s56, 16384"); A("s_add_u32 s55, s55, 1"); A("s_cmp_le_u32 s55, s42"); A(f"s_cbranch_scc1 {FL}")
    A(f"v_mov_b32 v10, v{vL}"); A(f"v_mov_b32 v11, v{vL}"); A("s_nop 1")
    A("v_permlane32_swap_b32 v10, v11"); A("s_nop 1")
    A(f"v_add_f32 v{vL}, v10, v11")
    A(f"s_branch {name}_fin")
    A.label(E); A("s_endpgm")
    return kernel_head(name) + A.text() + kernel_desc(name, 256), f"; @launch kernel={name} grid=(256,1,1) block=(512,1,1) lds=163840\n"
```

```python
from asmlib import *
KA = dict(x=0, ckv=8, wq=16, wuk=24, wuv=32, wo=40, bx=48, w1=56, w2=64, c=72, wmod=80, out=88, dbg=96, ws=104)
WS_MOD  = 0x0
WS_H1   = 0x100000
WS_CF   = 0x400000
WS_KV   = 0x1000000
WS_CTX  = 0x3000000
WS_PART = 0x4000000
WS_X1   = 0x5000000
WS_H2   = 0x5200000
WS_HID  = 0x5400000
WS_SIZE = 0x10000000
LOG2E = 1.4426950408889634

import struct
def f2u(x): return struct.unpack("<I", struct.pack("<f", x))[0]
def hx(x): return "0x%08x" % f2u(x)

def wave_sum(A, vr, sdst):
    for sh in (1, 2, 4, 8):
        A("s_nop 1")
        A(f"v_add_f32_dpp v{vr}, v{vr}, v{vr} row_shr:{sh} row_mask:0xf bank_mask:0xf bound_ctrl:0")
    A("s_nop 1")
    A(f"v_add_f32_dpp v{vr}, v{vr}, v{vr} row_bcast:15 row_mask:0xa bank_mask:0xf")
    A("s_nop 1")
    A(f"v_add_f32_dpp v{vr}, v{vr}, v{vr} row_bcast:31 row_mask:0xc bank_mask:0xf")
    A("s_nop 1")
    A(f"v_readlane_b32 s{sdst}, v{vr}, 63")
    A("s_nop 3")

def unpack_bf16(A, src, dst, n):
    for i in range(n):
        A(f"v_lshlrev_b32 v{dst+2*i}, 16, v{src+i}")
        A(f"v_and_b32 v{dst+2*i+1}, 0xffff0000, v{src+i}")

def layernorm_row(A, xf, n, gam, bet, st, tmp):
    N = 64 * n
    A(f"v_add_f32 v{tmp}, v{xf}, v{xf+1}")
    for i in range(2, n): A(f"v_add_f32 v{tmp}, v{tmp}, v{xf+i}")
    wave_sum(A, tmp, st)
    A(f"v_mov_b32 v{tmp}, {hx(-1.0/N)}")
    A(f"v_mul_f32 v{tmp}, s{st}, v{tmp}")
    for i in range(n): A(f"v_add_f32 v{xf+i}, v{xf+i}, v{tmp}")
    A(f"v_mul_f32 v{tmp}, v{xf}, v{xf}")
    for i in range(1, n): A(f"v_fmac_f32 v{tmp}, v{xf+i}, v{xf+i}")
    wave_sum(A, tmp, st)
    A(f"v_mov_b32 v{tmp}, {hx(1.0/N)}")
    A(f"v_mul_f32 v{tmp}, s{st}, v{tmp}")
    A(f"v_add_f32 v{tmp}, {hx(1e-5)}, v{tmp}")
    A(f"v_rsq_f32 v{tmp}, v{tmp}")
    A("s_nop 0")
    for i in range(n): A(f"v_mul_f32 v{xf+i}, v{xf+i}, v{tmp}")
    for i in range(n): A(f"v_fma_f32 v{xf+i}, v{xf+i}, v{gam+i}, v{bet+i}")

def round_bf16_inplace(A, r, n, tmp):
    for i in range(0, n, 2):
        A(f"v_cvt_pk_bf16_f32 v{tmp}, v{r+i}, v{r+i+1}")
        A(f"v_lshlrev_b32 v{r+i}, 16, v{tmp}")
        A(f"v_and_b32 v{r+i+1}, 0xffff0000, v{tmp}")

import os
PROF = os.environ.get("PROF", "") != ""
def stamp(A, i):
    if PROF:
        A(f"s_memtime s[{80+2*i}:{81+2*i}]")
        if i == 0: A("s_memrealtime s[96:97]")
def stamp_out(A, n, wg, wave_sreg, wave, base=0):
    if not PROF: return
    L = A.new("po")
    A("s_waitcnt lgkmcnt(0)")
    A(f"s_cmp_lg_u32 s2, {wg}"); A(f"s_cbranch_scc1 {L}")
    A(f"s_cmp_lg_u32 s{wave_sreg}, {wave}"); A(f"s_cbranch_scc1 {L}")
    A(f"s_load_dwordx2 s[76:77], s[0:1], {KA['dbg']}"); A("s_waitcnt lgkmcnt(0)")
    A("s_and_b32 s77, s77, 0xffff"); A("s_mov_b32 s78, 256"); A("s_mov_b32 s79, 0x20000")
    A("v_mov_b32 v1, 0")
    for i in range(1, n):
        A(f"s_sub_u32 s75, s{80+2*i}, s80"); A("v_mov_b32 v0, s75")
        A(f"buffer_store_dword v0, v1, s[76:79], 0 offen offset:{4*(base+i)}")
    A("s_memrealtime s[98:99]"); A("s_waitcnt lgkmcnt(0)")
    A("s_sub_u32 s75, s98, s96"); A("v_mov_b32 v0, s75")
    A(f"buffer_store_dword v0, v1, s[76:79], 0 offen offset:{4*base}")
    A("s_waitcnt vmcnt(0)")
    A.label(L)

WS_PROF = 0xF000000
def stamp_all(A, kidx, wave_sreg, wave):
    if not PROF: return
    L = A.new("pa")
    A(f"s_cmp_lg_u32 s{wave_sreg}, {wave}"); A(f"s_cbranch_scc1 {L}")
    A(f"s_load_dwordx2 s[76:77], s[0:1], {KA['ws']}"); A("s_memrealtime s[98:99]"); A("s_memtime s[94:95]"); A("s_waitcnt lgkmcnt(0)")
    A("s_and_b32 s77, s77, 0xffff"); A(f"s_mov_b32 s78, {WS_SIZE}"); A("s_mov_b32 s79, 0x20000")
    A(f"s_lshl_b32 s75, s2, 4"); A(f"s_add_u32 s75, s75, {WS_PROF + kidx*8192}")
    A("v_mov_b32 v1, 0")
    A("v_mov_b32 v4, s96"); A("v_mov_b32 v5, s98"); A("s_sub_u32 s74, s94, s80"); A("v_mov_b32 v6, s74"); A("s_getreg_b32 s74, hwreg(HW_REG_XCC_ID)"); A("v_mov_b32 v7, s74")
    A("buffer_store_dwordx4 v[4:7], v1, s[76:79], s75 offen")
    A("s_waitcnt vmcnt(0)")
    A.label(L)

class VM:
    def __init__(self, A): self.A = A; self.n = 0; self.tag = {}
    def issue(self, ins, tag=None):
        self.A(ins); self.n += 1
        if tag is not None: self.tag[tag] = self.n
    def need(self, *tags):
        last = max(self.tag[t] for t in tags)
        return min(63, self.n - last)
    def wait(self, *tags, extra=""):
        c = self.need(*tags)
        if getattr(self, "done", 0) >= max(self.tag[t] for t in tags) and not extra: return
        self.done = max(getattr(self, "done", 0), self.n - c)
        self.A(f"s_waitcnt vmcnt({c}) {extra}".strip())
```

```python
from gen_common import *
STC = os.environ.get("STC_KV", "sc1")
def gen_kv(name="kv_kernel"):
    A = Asm()
    E = f"{name}_end"
    A(f"s_cmp_ge_u32 s2, 256"); A(f"s_cbranch_scc1 {E}")
    if os.environ.get("SPF", "0") == "1" and os.environ.get("SPFA", "1") == "1": code_pf(A, "kv_kernel", "kv_kernel_end", 0, 8, 3, 252, 70, True)
    stamp(A, 0)
    A(f"s_load_dwordx2 s[4:5], s[0:1], {KA['ckv']}")
    A(f"s_load_dwordx2 s[6:7], s[0:1], {KA['wuk']}")
    A(f"s_load_dwordx2 s[8:9], s[0:1], {KA['wuv']}")
    A(f"s_load_dwordx2 s[10:11], s[0:1], {KA['ws']}")
    A(f"s_load_dwordx2 s[12:13], s[0:1], {KA['x']}")
    A(f"s_load_dwordx2 s[48:49], s[0:1], {KA['wq']}")
    A("s_and_b32 s14, s2, 7"); A("s_lshl_b32 s14, s14, 2")
    A("s_lshr_b32 s15, s2, 3"); A("s_and_b32 s15, s15, 3"); A("s_add_u32 s14, s14, s15")
    A("s_bfe_u32 s17, s2, 0x10005")
    A("s_lshr_b32 s15, s2, 6")
    A("v_lshrrev_b32 v1, 6, v0"); A("s_nop 0"); A("v_readfirstlane_b32 s16, v1")
    A("v_and_b32 v1, 63, v0")
    A("s_waitcnt lgkmcnt(0)")
    A("s_cmp_eq_u32 s17, 0"); A("s_cselect_b32 s6, s6, s8"); A("s_cselect_b32 s7, s7, s9")
    srd(A, 20, 4, 2048*512*2)
    srd(A, 24, 6, 512*4096*2)
    srd(A, 32, 10, WS_SIZE)
    srd(A, 36, 12, 2048*512*2)
    A("v_lshrrev_b32 v6, 4, v1")
    A("v_and_b32 v5, 15, v1"); A("v_lshlrev_b32 v7, 2, v6"); A("v_xor_b32 v5, v5, v7"); A("v_lshlrev_b32 v5, 4, v5")
    A("s_lshl_b32 s18, s16, 5"); A("v_add_u32 v7, s18, v6"); A("v_lshlrev_b32 v7, 13, v7")
    A("s_lshl_b32 s18, s14, 8"); A("v_add_u32 v7, s18, v7"); A("v_add_u32 v10, v7, v5")
    for j in range(1, 4): A(f"v_add_u32 v{10+j}, {j*(4*8192-1024)}, v10")
    A("v_lshlrev_b32 v14, 4, v1")
    A("s_lshl_b32 s40, s15, 9"); A("s_lshl_b32 s18, s16, 7"); A("s_add_u32 s40, s40, s18"); A("s_lshl_b32 s40, s40, 10"); A(f"s_add_u32 s40, s40, {WS_CF}")
    def cload(s_, base):
        return f"s_add_u32 s47, s{base}, {(s_//4)*4096}\nbuffer_load_dwordx4 a[{4*s_}:{4*s_+3}], v14, s[32:35], s47 offen offset:{1024*(s_%4)}"
    def wdma_ops(c):
        ops = []
        for half in range(2):
            for j in range(4):
                pre = []
                if j == 0: pre = [f"s_lshl_b32 s18, s16, 13", f"s_mov_b32 s19, {(128*c + 16*half)*8192}", f"s_add_u32 m0, s18, {c*32768 + half*4096}", "s_nop 0"]
                ops.append((pre, f"buffer_load_dwordx4 v{10+j}, s[24:27], s19 offen offset:{1024*j} lds"))
        return ops
    PRO = []
    A("v_lshrrev_b32 v4, 4, v1"); A("v_bfe_u32 v5, v1, 2, 2"); A("v_and_b32 v6, 3, v1")
    A("v_lshrrev_b32 v7, 1, v4"); A("v_lshlrev_b32 v7, 3, v7"); A("v_add_u32 v7, v7, v5"); A("v_lshlrev_b32 v7, 8, v7")
    A("v_and_b32 v8, 1, v4"); A("v_lshlrev_b32 v8, 1, v8"); A("v_lshrrev_b32 v9, 1, v6"); A("v_add_u32 v8, v8, v9"); A("v_lshlrev_b32 v8, 4, v8")
    A("v_and_b32 v9, 1, v6"); A("v_lshlrev_b32 v9, 3, v9"); A("v_add_u32 v8, v8, v9"); A("v_add_u32 v7, v7, v8")
    for nb in range(4):
        A(f"v_xor_b32 v8, {nb}, v5"); A("v_lshlrev_b32 v8, 6, v8"); A(f"v_add_u32 v{16+nb}, v7, v8")
        A(f"v_add_u32 v{20+nb}, 0x10000, v{16+nb}")
    A("v_lshlrev_b32 v2, 4, v1")
    A("s_lshl_b32 s41, s14, 6"); A("s_lshl_b32 s18, s15, 4"); A("s_add_u32 s41, s41, s18"); A("s_lshl_b32 s18, s16, 2"); A("s_add_u32 s41, s41, s18")
    A("s_lshl_b32 s41, s41, 14"); A(f"s_add_u32 s41, s41, {WS_KV}"); A("s_lshl_b32 s18, s17, 13"); A("s_add_u32 s41, s41, s18")
    WB = [32, 48]; ACC = [128, 192]
    def wreads(s_, setb, nb):
        ar = (16 if s_ < 16 else 20) + nb; off = (s_ % 16) * 4096
        r = WB[setb] + 4*nb
        return [f"ds_read_b64_tr_b16 v[{r}:{r+1}], v{ar} offset:{off}", f"ds_read_b64_tr_b16 v[{r+2}:{r+3}], v{ar} offset:{off+1024}"]
    def body(ktype):
        vm = VM(A)
        def dma(c, j):
            pre, ins = wdma_ops(c)[j]
            for l in pre: A(l)
            vm.issue(ins, ('D', c, j))
        def cl_(p, s_, base):
            A(f"s_add_u32 s47, s{base}, {(s_//4)*4096}")
            vm.issue(f"buffer_load_dwordx4 a[{4*s_}:{4*s_+3}], v14, s[32:35], s47 offen offset:{1024*(s_%4)}", ('C', p, s_))
        for j in range(8): dma(0, j)
        for s_ in range(8): cl_(0, s_, 40)
        for j in range(8): dma(1, j)
        def epi_items(acc, sb):
            it = []
            for nb in range(4):
                a0 = acc + 16*nb
                for i in range(8): it.append(('v', f"v_cvt_pk_bf16_f32 v{a0+i}, v{a0+2*i}, v{a0+2*i+1}"))
                for t in range(2):
                    f = (2*nb + t) if ktype else (4*t + nb)
                    it.append(('s', f"buffer_store_dwordx4 v[{a0+4*t}:{a0+4*t+3}], v2, s[32:35], s{sb + f//4} offen offset:{(f%4)*1024} {STC}"))
            return it
        def emit_epi(it):
            if it[0] == 'v': A(it[1])
            else: vm.issue(it[1])
        dq = [(c, j) for c in (2, 3) for j in range(8)]
        def pas(p):
            acc = ACC[p % 2]
            epi = []
            if p > 0:
                A(f"s_add_u32 s42, s41, {(p-1)*16384}"); A(f"s_add_u32 s43, s41, {(p-1)*16384+4096}")
                epi = epi_items(ACC[(p-1) % 2], 42)
            if p < 3: A(f"s_add_u32 s44, s40, {(p+1)*32768}")
            for s_ in range(32):
                if p == 0 and s_ == 0:
                    vm.wait(('D', 0, 7)); A("s_barrier")
                    stamp(A, 1)
                    for nb in range(4):
                        for l in wreads(0, 0, nb): A(l)
                nxt = s_ + 1
                if p == 0 and nxt % 8 == 0 and nxt < 32:
                    vm.wait(('D', nxt // 8, 7)); A("s_barrier")
                vm.wait(('C', p, s_))
                for nb in range(4):
                    A(f"s_waitcnt lgkmcnt({6-2*nb if (p == 3 and s_ == 31) else 6})")
                    w = f"v[{WB[s_%2]+4*nb}:{WB[s_%2]+4*nb+3}]"; c_ = f"a[{4*s_}:{4*s_+3}]"
                    a_, b_ = (w, c_) if ktype else (c_, w)
                    d = f"v[{acc+16*nb}:{acc+16*nb+15}]"
                    A(f"v_mfma_f32_32x32x16_bf16 {d}, {a_}, {b_}, {'0' if s_ == 0 else d}")
                    if not (p == 3 and s_ == 31):
                        for l in wreads((s_+1) % 32, (s_+1) % 2, nb): A(l)
                    if p == 0:
                        if nb == 0 and s_ < 24: cl_(0, s_ + 8, 40)
                        if nb in (2, 3) and dq: dma(*dq.pop(0))
                    if nb == 1 and p < 3 and s_ >= 1: cl_(p+1, s_-1, 44)
                    if nb >= 2 and s_ >= 1 and epi: emit_epi(epi.pop(0))
                    if p == 3 and s_ == 24 and nb == 0: ln_loads(vm)
                if p < 3 and s_ == 31: cl_(p+1, 31, 44)
            assert not epi
        for p in range(4): pas(p)
        stamp(A, 2)
        A("s_nop 7"); A("s_nop 7")
        A(f"s_add_u32 s42, s41, {3*16384}"); A(f"s_add_u32 s43, s41, {3*16384+4096}")
        for it in epi_items(ACC[1], 42): emit_epi(it)
        if os.environ.get("PF", "1") == "1":
            srd(A, 52, 48, 512*4096*2)
            A("s_lshr_b32 s50, s2, 3"); A("s_lshl_b32 s50, s50, 2"); A("s_add_u32 s50, s50, s16"); A("s_lshl_b32 s50, s50, 15")
            A("s_and_b32 s51, s2, 7"); A("s_lshl_b32 s51, s51, 10"); A("s_add_u32 s50, s50, s51")
            for i in range(4):
                vm.issue(f"buffer_load_dwordx4 a[{4*i}:{4*i+3}], v2, s[52:55], s50 offen")
                A("s_add_u32 s50, s50, 8192")
        stamp(A, 3)
        vm.wait('LN')
        A(f"s_branch {name}_ln")
    def ln_loads(vm):
        A("v_lshlrev_b32 v3, 5, v1")
        A(f"s_mov_b32 s18, {WS_MOD}")
        A("s_lshl_b32 s17, s2, 3"); A("s_lshl_b32 s19, s16, 1"); A("s_add_u32 s17, s17, s19"); A("s_lshl_b32 s19, s17, 10")
        vm.issue("buffer_load_dwordx4 v[24:27], v2, s[36:39], s19 offen")
        vm.issue("buffer_load_dwordx4 v[64:67], v2, s[36:39], s19 offen offset:1024")
        vm.issue("buffer_load_dwordx4 v[72:75], v3, s[32:35], s18 offen")
        vm.issue("buffer_load_dwordx4 v[76:79], v3, s[32:35], s18 offen offset:16")
        vm.issue("buffer_load_dwordx4 v[80:83], v3, s[32:35], s18 offen offset:2048")
        vm.issue("buffer_load_dwordx4 v[84:87], v3, s[32:35], s18 offen offset:2064", 'LN')
    A("s_cmp_eq_u32 s17, 1"); A(f"s_cbranch_scc1 {name}_v")
    body(True)
    A.label(f"{name}_v")
    body(False)
    A.label(f"{name}_ln")
    A("v_lshrrev_b32 v4, 1, v1"); A("v_lshlrev_b32 v4, 10, v4"); A("v_and_b32 v5, 1, v1"); A("v_lshlrev_b32 v5, 9, v5"); A("v_add_u32 v4, v4, v5")
    A("s_lshr_b32 s18, s17, 5"); A("s_lshl_b32 s18, s18, 15"); A("s_and_b32 s19, s17, 31"); A("s_lshl_b32 s19, s19, 4")
    A("s_add_u32 s18, s18, s19"); A(f"s_add_u32 s46, s18, {WS_H1}")
    for i in range(8): A(f"v_add_f32 v{80+i}, 1.0, v{80+i}")
    for r, src in ((0, 24), (1, 64)):
        unpack_bf16(A, src, 28, 4)
        layernorm_row(A, 28, 8, 80, 72, 18, 36)
        for i in range(4): A(f"v_cvt_pk_bf16_f32 v{88+4*r+i}, v{28+2*i}, v{29+2*i}")
        A(f"buffer_store_dwordx4 v[{88+4*r}:{91+4*r}], v4, s[32:35], s46 offen offset:{16*r}")
    A("v_lshlrev_b32 v122, 6, s16" if False else "v_mov_b32 v122, s16"); A("v_lshlrev_b32 v122, 6, v122"); A("v_add_u32 v122, v122, v1")
    code_pf(A, "attn_kernel", "attn_kernel_end", 122, 8, 2, 124, 50)
    if PROF: A("s_waitcnt vmcnt(0)")
    stamp(A, 4)
    stamp_out(A, 5, 37, 16, 0, 0)
    A.label(E); A("s_endpgm")
    return kernel_head(name) + A.text() + kernel_desc(name, 512, accum=256), f"; @launch kernel={name} grid=(256,1,1) block=(256,1,1) lds=131072\n"
```

```python
from gen_common import *
STC = os.environ.get("STC", "sc1")

def gemm(name, nwg, S, MR, NB, rowB, dmap, wkey, wstride, wbytes, C, R, ids, act, epi, lds, w_is_A=True, WD=2):
    A = Asm(); E = f"{name}_end"
    A(f"s_cmp_ge_u32 s2, {nwg}"); A(f"s_cbranch_scc1 {E}")
    stamp(A, 0)
    A(f"s_load_dwordx2 s[4:5], s[0:1], {KA[wkey]}")
    A(f"s_load_dwordx2 s[10:11], s[0:1], {KA['ws']}")
    A(f"s_load_dwordx2 s[12:13], s[0:1], {KA['out']}")
    A("v_lshrrev_b32 v1, 6, v0"); A("s_nop 0"); A("v_readfirstlane_b32 s16, v1"); A("v_and_b32 v1, 63, v0"); A("v_lshlrev_b32 v2, 4, v1")
    ids(A)
    A("s_waitcnt lgkmcnt(0)")
    srd(A, 24, 4, wbytes); srd(A, 32, 10, WS_SIZE); srd(A, 36, 12, 2048*512*2)
    RP, LP = 1024 // rowB, rowB // 16
    rows_chunk = 16 * S // C; nper = rows_chunk * rowB // 1024 // 4; spc = S // C
    lg = {4: 2, 8: 3, 16: 4}[LP]
    A(f"v_lshrrev_b32 v6, {lg}, v1"); A(f"v_and_b32 v5, {LP-1}, v1")
    if rowB == 256: A("v_lshlrev_b32 v7, 2, v6"); A("v_xor_b32 v5, v5, v7")
    if rowB == 128: A("v_lshlrev_b32 v7, 1, v6"); A("v_and_b32 v7, 4, v7"); A("v_xor_b32 v5, v5, v7")
    A("v_lshlrev_b32 v5, 4, v5")
    A(f"s_mul_i32 s18, s16, {nper*RP}"); A("v_add_u32 v7, s18, v6"); A(f"s_mov_b32 s18, {wstride}"); A("v_mul_lo_u32 v7, v7, s18")
    A("v_add_u32 v10, v7, v5")
    nv = min(4, nper)
    for j in range(1, nv): A(f"v_add_u32 v{10+j}, {j*(RP*wstride-1024)}, v10")
    vm = VM(A)
    def dma(c, j):
        if j % 4 == 0:
            A(f"s_mul_i32 s18, s16, {nper*1024}"); A(f"s_add_u32 s19, s20, {(c*rows_chunk + j*RP)*wstride}")
            A(f"s_add_u32 m0, s18, {c*rows_chunk*rowB + j*1024}"); A("s_nop 0")
        vm.issue(f"buffer_load_dwordx4 v{10+j%4}, s[24:27], s19 offen offset:{1024*(j%4)} lds", ('D', c))
    AB = 256
    nact = S * MR
    def aload(i):
        s_, mr = i // MR, i % MR; slot = i % R
        off = mr * act + s_ * 1024
        A(f"s_add_u32 s47, s21, {off & ~4095}")
        vm.issue(f"buffer_load_dwordx4 a[{4*slot}:{4*slot+3}], v2, s[32:35], s47 offen offset:{off & 4095}", ('A', i))
    for j in range(nper): dma(0, j)
    npre = min(R, nact)
    for i in range(min(8, npre)): aload(i)
    for j in range(nper): dma(1, j)
    win = 65536 // (16 * rowB); nwin = (S + win - 1) // win
    A("v_lshrrev_b32 v4, 4, v1"); A("v_bfe_u32 v5, v1, 2, 2"); A("v_and_b32 v6, 3, v1")
    A(f"v_lshrrev_b32 v7, 1, v4"); A(f"v_lshlrev_b32 v7, {2 if dmap else 3}, v7"); A("v_add_u32 v7, v7, v5"); A(f"v_mul_u32_u24 v7, {rowB}, v7")
    A("v_and_b32 v8, 1, v4"); A("v_lshlrev_b32 v8, 1, v8"); A("v_lshrrev_b32 v9, 1, v6"); A("v_add_u32 v8, v8, v9"); A("v_lshlrev_b32 v8, 4, v8")
    A("v_and_b32 v9, 1, v6"); A("v_lshlrev_b32 v9, 3, v9"); A("v_add_u32 v8, v8, v9"); A("v_add_u32 v7, v7, v8")
    if rowB == 128: A("v_lshrrev_b32 v5, 1, v5")
    TA = 16
    for nb in range(NB):
        if rowB == 64: A(f"v_mov_b32 v{TA+nb}, v7")
        else: A(f"v_xor_b32 v8, {nb}, v5"); A("v_lshlrev_b32 v8, 6, v8"); A(f"v_add_u32 v{TA+nb}, v7, v8")
        for wn in range(1, nwin): A(f"v_add_u32 v{TA+wn*NB+nb}, {wn*65536}, v{TA+nb}")
    sec = (8 if dmap else 4) * rowB
    WB = [32 + 4*NB*i for i in range(WD)]; ACC = 128
    lg_n = [0]; lg_tag = {}
    def wreads(s_, nb):
        ar = TA + (s_ // win) * NB + nb; off = (s_ % win) * 16 * rowB; r = WB[s_ % WD] + 4*nb
        A(f"ds_read_b64_tr_b16 v[{r}:{r+1}], v{ar} offset:{off}"); A(f"ds_read_b64_tr_b16 v[{r+2}:{r+3}], v{ar} offset:{off+sec}")
        lg_n[0] += 2; lg_tag[(s_, nb)] = lg_n[0]
    dq = [(c, j) for c in range(2, C) for j in range(nper)]
    nxt_a = min(8, npre)
    nrd = 2 * NB
    for s_ in range(S):
        if s_ == 0:
            vm.wait(('D', 0)); A("s_barrier"); stamp(A, 1)
            for q in range(WD - 1):
                for nb in range(NB): wreads(q, nb)
        if (s_ + WD - 1) % spc == 0 and s_ + WD - 1 < S:
            vm.wait(('D', (s_ + WD - 1) // spc)); A("s_barrier")
        vm.wait(*[('A', s_*MR + mr) for mr in range(MR)])
        k = 0
        for nb in range(NB):
            for mr in range(MR):
                if mr == 0:
                    A(f"s_waitcnt lgkmcnt({min(15, lg_n[0] - lg_tag[(s_, nb)])})")
                slot = (s_*MR + mr) % R
                w = f"v[{WB[s_%WD]+4*nb}:{WB[s_%WD]+4*nb+3}]"; x_ = f"a[{4*slot}:{4*slot+3}]"
                d0 = ACC + 16*(mr*NB + nb); d = f"v[{d0}:{d0+15}]"
                a_, b_ = (w, x_) if w_is_A else (x_, w)
                A(f"v_mfma_f32_32x32x16_bf16 {d}, {a_}, {b_}, {'0' if s_ == 0 else d}")
                if mr == MR - 1 and s_ + WD - 1 < S: wreads(s_ + WD - 1, nb)
                if k == 0 or (MR*NB >= 4 and k == 2):
                    lim = min(nact, max(npre, (s_ - 1) * MR + MR - 1 + R + 1 - 0) if s_ >= 1 else npre)
                    lim = min(nact, (s_ * MR) + R) if s_ >= 1 else min(nact, npre)
                    for _ in range(2 if nxt_a < npre else MR):
                        if nxt_a < lim: aload(nxt_a); nxt_a += 1
                if k == MR*NB - 1 and dq:
                    dma(*dq.pop(0))
                    if nper > spc and dq: dma(*dq.pop(0))
                k += 1
    assert nxt_a == nact and not dq, (nxt_a, nact, dq)
    stamp(A, 2)
    A("s_nop 7"); A("s_nop 7")
    epi(A, ACC, vm)
    if PROF: A("s_waitcnt vmcnt(0)")
    stamp(A, 3)
    stamp_out(A, 4, 37, 16, 0, 0)
    A.label(E); A("s_endpgm")
    return kernel_head(name) + A.text() + kernel_desc(name, 512, accum=256), f"; @launch kernel={name} grid=({nwg},1,1) block=(256,1,1) lds={lds}\n"

def gemm2(name, nwg, S, MR, phases, wkey, wstride, wbytes, C, ids, act, epi_addr, epi_block, lds, D=5, prof_wg=37):
    NB = 4; rowB = 256
    A = Asm(); E = f"{name}_end"
    A(f"s_cmp_ge_u32 s2, {nwg}"); A(f"s_cbranch_scc1 {E}")
    stamp(A, 0)
    A(f"s_load_dwordx2 s[4:5], s[0:1], {KA[wkey]}")
    A(f"s_load_dwordx2 s[10:11], s[0:1], {KA['ws']}")
    A("v_lshrrev_b32 v1, 6, v0"); A("s_nop 0"); A("v_readfirstlane_b32 s16, v1"); A("v_and_b32 v1, 63, v0"); A("v_lshlrev_b32 v2, 4, v1")
    ids(A)
    rows_chunk = 16 * S // C; nper = rows_chunk * rowB // 1024 // 4; spc = S // C
    A("v_lshrrev_b32 v6, 4, v1"); A("v_and_b32 v5, 15, v1"); A("v_lshlrev_b32 v7, 2, v6"); A("v_xor_b32 v5, v5, v7"); A("v_lshlrev_b32 v5, 4, v5")
    A(f"s_mul_i32 s18, s16, {nper*4}"); A("v_add_u32 v7, s18, v6"); A(f"s_mov_b32 s18, {wstride}"); A("v_mul_lo_u32 v7, v7, s18")
    A("v_add_u32 v10, v7, v5")
    for j in range(1, min(4, nper)): A(f"v_add_u32 v{10+j}, {j*(4*wstride-1024)}, v10")
    A("s_waitcnt lgkmcnt(0)")
    srd(A, 24, 4, wbytes); srd(A, 32, 10, WS_SIZE)
    vm = VM(A)
    def dma(c, j):
        if j % 4 == 0:
            A(f"s_mul_i32 s18, s16, {nper*1024}"); A(f"s_add_u32 s19, s20, {(c*rows_chunk + j*4)*wstride}")
            A(f"s_add_u32 m0, s18, {c*rows_chunk*rowB + j*1024}"); A("s_nop 0")
        vm.issue(f"buffer_load_dwordx4 v{10+j%4}, s[24:27], s19 offen offset:{1024*(j%4)} lds", ('D', c))
    nact = S * MR
    def aload(i):
        s_, mr = i // MR, i % MR
        off = mr * act + s_ * 1024
        A(f"s_add_u32 s47, s21, {off & ~4095}")
        vm.issue(f"buffer_load_dwordx4 a[{4*i}:{4*i+3}], v2, s[32:35], s47 offen offset:{off & 4095}", ('A', i))
    for j in range(nper): dma(0, j)
    for i in range(spc * MR): aload(i)
    for j in range(nper): dma(1, j)
    rest = []
    for c in range(1, C):
        if c >= 2: rest += [('d', c, j) for j in range(nper)]
        rest += [('a', i) for i in range(c*spc*MR, (c+1)*spc*MR)]
    A("v_lshrrev_b32 v4, 4, v1"); A("v_bfe_u32 v5, v1, 2, 2"); A("v_and_b32 v6, 3, v1")
    A("v_lshrrev_b32 v7, 1, v4"); A("v_lshlrev_b32 v7, 2, v7"); A("v_add_u32 v7, v7, v5"); A(f"v_mul_u32_u24 v7, {rowB}, v7")
    A("v_and_b32 v8, 1, v4"); A("v_lshlrev_b32 v8, 1, v8"); A("v_lshrrev_b32 v9, 1, v6"); A("v_add_u32 v8, v8, v9"); A("v_lshlrev_b32 v8, 4, v8")
    A("v_and_b32 v9, 1, v6"); A("v_lshlrev_b32 v9, 3, v9"); A("v_add_u32 v8, v8, v9"); A("v_add_u32 v7, v7, v8")
    nwin = (S + 15) // 16; TA = 16
    for nb in range(NB):
        A(f"v_xor_b32 v8, {nb}, v5"); A("v_lshlrev_b32 v8, 6, v8"); A(f"v_add_u32 v{TA+nb}, v7, v8")
        for wn in range(1, nwin): A(f"v_add_u32 v{TA+wn*NB+nb}, {wn*65536}, v{TA+nb}")
    epi_addr(A)
    ACC = 128; RING = 8; WB = 32
    uses = [(s_, nb) for ph in phases for s_ in range(S) for nb in ph]
    lg_n = [0]; lg_tag = {}; landed = set()
    def wread(i):
        s_, nb = uses[i]
        c = s_ // spc
        if c not in landed:
            vm.wait(('D', c)); A("s_barrier"); landed.add(c)
            if c == 0: stamp(A, 1)
        ar = TA + (s_ // 16) * NB + nb; off = (s_ % 16) * 16 * rowB; r = WB + 4*(i % RING)
        A(f"ds_read_b64_tr_b16 v[{r}:{r+1}], v{ar} offset:{off}"); A(f"ds_read_b64_tr_b16 v[{r+2}:{r+3}], v{ar} offset:{off+8*rowB}")
        lg_n[0] += 2; lg_tag[i] = lg_n[0]
    for i in range(D): wread(i)
    epq = []
    done_nb = []
    phase_end = {}
    k = 0
    for ph in phases:
        k += S * len(ph); phase_end[k - 1] = ph
    hold = 0
    nmf = len(uses) * MR; mi = 0
    for i, (s_, nb) in enumerate(uses):
        first_phase = i < S * len(phases[0])
        if first_phase: vm.wait(*[('A', s_*MR + mr) for mr in range(MR)])
        A(f"s_waitcnt lgkmcnt({min(15, lg_n[0] - lg_tag[i])})")
        for mr in range(MR):
            w = f"v[{WB+4*(i%RING)}:{WB+4*(i%RING)+3}]"; x_ = f"a[{4*(s_*MR+mr)}:{4*(s_*MR+mr)+3}]"
            d0 = ACC + 16*(mr*NB + nb); d = f"v[{d0}:{d0+15}]"
            A(f"v_mfma_f32_32x32x16_bf16 {d}, {w}, {x_}, {'0' if s_ == 0 else d}")
            mi += 1
            if mr == MR - 1 and i + D < len(uses): wread(i + D)
            if rest:
                for _ in range(2 if MR == 2 else 1):
                    if rest:
                        op = rest.pop(0)
                        if op[0] == 'd': dma(op[1], op[2])
                        else: aload(op[1])
            elif hold > 0: hold -= 1
            elif epq:
                left = min(j for j in phase_end if j >= i) - i + 1
                per = max(1, min(5, -(-len(epq) // max(1, left * MR - 3))))
                n = 0
                while epq and n < per:
                    it = epq.pop(0)
                    if it[0] == 's':
                        vm.issue(it[1]); n += 2
                    else: A(it[1]); n += 1
        if i in phase_end:
            assert not rest
            for nb2 in phase_end[i]:
                for mr in range(MR): epq += epi_block(ACC + 16*(mr*NB + nb2), mr, nb2)
            hold = 3
    stamp(A, 2)
    A("s_nop 7"); A("s_nop 7")
    for it in epq:
        if it[0] == 's': vm.issue(it[1])
        else: A(it[1])
    if PROF: A("s_waitcnt vmcnt(0)")
    stamp(A, 3)
    stamp_out(A, 4, prof_wg, 16, 0, 0)
    A.label(E); A("s_endpgm")
    return kernel_head(name) + A.text() + kernel_desc(name, 512, accum=256), f"; @launch kernel={name} grid=({nwg},1,1) block=(256,1,1) lds={lds}\n"

def gen_oproj2():
    def ids(A):
        A("s_and_b32 s15, s2, 7"); A("s_bfe_u32 s14, s2, 0x30003"); A("s_lshr_b32 s17, s2, 6")
        A("s_lshl_b32 s20, s15, 19"); A("s_lshl_b32 s18, s17, 8"); A("s_add_u32 s20, s20, s18")
        A("s_lshl_b32 s21, s14, 3"); A("s_lshl_b32 s18, s16, 1"); A("s_add_u32 s21, s21, s18")
        A("s_mov_b32 s22, s21")
        A("s_lshl_b32 s21, s21, 18"); A("s_lshl_b32 s18, s15, 15"); A("s_add_u32 s21, s21, s18"); A(f"s_add_u32 s21, s21, {WS_CTX}")
    def epi_addr(A):
        A("s_lshl_b32 s40, s22, 18"); A("s_lshl_b32 s41, s15, 15"); A("s_add_u32 s40, s40, s41"); A("s_lshl_b32 s41, s17, 13"); A("s_add_u32 s40, s40, s41")
        A(f"s_add_u32 s40, s40, {WS_PART}"); A("s_add_u32 s41, s40, 4096")
        A(f"s_add_u32 s42, s40, {1 << 18}"); A("s_add_u32 s43, s42, 4096")
    def epi_block(a0, mr, nb):
        it = []
        for t in range(2):
            for i in range(4*t, 4*t+4): it.append(('v', f"v_cvt_pk_bf16_f32 v{a0+i}, v{a0+2*i}, v{a0+2*i+1}"))
        for t in range(2):
            f = 2*nb + t
            it.append(('s', f"buffer_store_dwordx4 v[{a0+4*t}:{a0+4*t+3}], v2, s[32:35], s{40 + 2*mr + f//4} offen offset:{(f%4)*1024} {STC}"))
        return it
    return gemm2("oproj_kernel", 256, 32, 2, [(0, 1), (2,), (3,)], 'wo', 1024, 4096*512*2, 4, ids, 262144, epi_addr, epi_block, 131072)

def gen_mlp12():
    def ids(A):
        A("s_and_b32 s14, s2, 15"); A("s_lshr_b32 s17, s2, 4")
        A("s_lshl_b32 s20, s17, 8")
        A("s_lshl_b32 s22, s14, 2"); A("s_add_u32 s22, s22, s16")
        A("s_lshl_b32 s21, s22, 15"); A(f"s_add_u32 s21, s21, {WS_H2}")
    def epi_addr(A):
        A(f"s_mul_i32 s40, s22, {112*1024}"); A("s_lshl_b32 s41, s17, 13"); A("s_add_u32 s40, s40, s41"); A(f"s_add_u32 s40, s40, {WS_HID}"); A("s_add_u32 s41, s40, 4096")
    def epi_block(a0, mr, nb):
        it = []; T = 64 + 16 * (nb % 2)
        for i in range(16): it.append(('v', f"v_mul_f32 v{T+i}, {hx(-LOG2E)}, v{a0+i}"))
        for i in range(16): it.append(('v', f"v_exp_f32 v{T+i}, v{T+i}"))
        for i in range(16): it.append(('v', f"v_add_f32 v{T+i}, 1.0, v{T+i}"))
        for i in range(16): it.append(('v', f"v_rcp_f32 v{T+i}, v{T+i}"))
        for i in range(16): it.append(('v', f"v_mul_f32 v{a0+i}, v{a0+i}, v{T+i}"))
        for i in range(8): it.append(('v', f"v_cvt_pk_bf16_f32 v{a0+i}, v{a0+2*i}, v{a0+2*i+1}"))
        for t in range(2):
            f = 2*nb + t
            it.append(('s', f"buffer_store_dwordx4 v[{a0+4*t}:{a0+4*t+3}], v2, s[32:35], s{40 + f//4} offen offset:{(f%4)*1024} {STC}"))
        return it
    return gemm2("mlp1_kernel", 224, 32, 1, [(0, 1), (2,), (3,)], 'w1', 3584, 512*1792*2, 4, ids, 0, epi_addr, epi_block, 131072, D=6)

def gen_oproj():
    def ids(A):
        A("s_and_b32 s15, s2, 7"); A("s_bfe_u32 s14, s2, 0x30003"); A("s_lshr_b32 s17, s2, 6")
        A("s_lshl_b32 s20, s15, 19"); A("s_lshl_b32 s18, s17, 8"); A("s_add_u32 s20, s20, s18")
        A("s_lshl_b32 s21, s14, 3"); A("s_lshl_b32 s18, s16, 1"); A("s_add_u32 s21, s21, s18")
        A("s_mov_b32 s22, s21")
        A("s_lshl_b32 s21, s21, 18"); A("s_lshl_b32 s18, s15, 15"); A("s_add_u32 s21, s21, s18"); A(f"s_add_u32 s21, s21, {WS_CTX}")
    def epi(A, ACC, vm):
        A("s_lshl_b32 s18, s22, 18"); A("s_lshl_b32 s19, s15, 15"); A("s_add_u32 s18, s18, s19"); A("s_lshl_b32 s19, s17, 13"); A("s_add_u32 s18, s18, s19")
        A(f"s_add_u32 s18, s18, {WS_PART}"); A("s_add_u32 s19, s18, 4096")
        A(f"s_add_u32 s40, s18, {1 << 18}"); A("s_add_u32 s41, s40, 4096")
        for mr in range(2):
            for nb in range(4):
                a0 = ACC + 16*(mr*4 + nb)
                for i in range(8): A(f"v_cvt_pk_bf16_f32 v{a0+i}, v{a0+2*i}, v{a0+2*i+1}")
                for t in range(2):
                    f = 2*nb + t; sb = (18 if mr == 0 else 40) + f // 4
                    A(f"buffer_store_dwordx4 v[{a0+4*t}:{a0+4*t+3}], v2, s[32:35], s{sb} offen offset:{(f%4)*1024} {STC}")
    return gemm("oproj_kernel", 256, 32, 2, 4, 256, True, 'wo', 1024, 4096*512*2, 4, 32, ids, 262144, epi, 131072)

def gen_red():
    name = "red_kernel"; A = Asm(); E = f"{name}_end"
    A(f"s_cmp_ge_u32 s2, 256"); A(f"s_cbranch_scc1 {E}")
    stamp(A, 0)
    A(f"s_load_dwordx2 s[4:5], s[0:1], {KA['x']}"); A(f"s_load_dwordx2 s[10:11], s[0:1], {KA['ws']}")
    A("v_lshrrev_b32 v1, 6, v0"); A("s_nop 0"); A("v_readfirstlane_b32 s16, v1"); A("v_and_b32 v1, 63, v0")
    A("s_lshr_b32 s17, s2, 2"); A("s_and_b32 s14, s2, 3")
    A("v_lshrrev_b32 v4, 4, v1"); A("v_bfe_u32 v5, v1, 3, 1"); A("v_and_b32 v6, 7, v1")
    A("v_lshlrev_b32 v2, 10, v4"); A("v_lshlrev_b32 v7, 9, v5"); A("v_add_u32 v2, v2, v7"); A("v_lshlrev_b32 v7, 4, v6"); A("v_add_u32 v2, v2, v7")
    A("v_lshlrev_b32 v8, 4, v4"); A("v_lshlrev_b32 v7, 2, v5"); A("v_add_u32 v8, v8, v7")
    A("v_lshlrev_b32 v3, 1, v8"); A("v_lshlrev_b32 v7, 10, v6"); A("v_add_u32 v3, v3, v7"); A("v_lshlrev_b32 v9, 2, v8")
    A("s_lshl_b32 s15, s16, 12"); A("s_lshl_b32 s18, s14, 7"); A("s_add_u32 s15, s15, s18")
    A("s_waitcnt lgkmcnt(0)")
    srd(A, 20, 4, 2048*512*2); srd(A, 32, 10, WS_SIZE)
    A("s_lshl_b32 s18, s17, 18"); A("s_add_u32 s18, s18, s15"); A(f"s_add_u32 s18, s18, {WS_PART}")
    P = 32
    for ks in range(8):
        A(f"buffer_load_dwordx4 v[{P+4*ks}:{P+4*ks+3}], v2, s[32:35], s18 offen")
        if ks < 7: A("s_add_u32 s18, s18, 32768")
    A("s_lshl_b32 s19, s17, 15"); A("s_lshl_b32 s18, s14, 13"); A("s_add_u32 s19, s19, s18"); A("s_lshl_b32 s18, s16, 7"); A("s_add_u32 s19, s19, s18")
    A("buffer_load_dwordx2 v[24:25], v3, s[20:23], s19 offen"); A("buffer_load_dwordx2 v[26:27], v3, s[20:23], s19 offen offset:16")
    A("s_lshl_b32 s18, s16, 8")
    for (reg, m) in ((64, 2), (72, 3), (80, 4)):
        A(f"s_add_u32 s19, s18, {WS_MOD + m*2048}")
        A(f"buffer_load_dwordx4 v[{reg}:{reg+3}], v9, s[32:35], s19 offen"); A(f"buffer_load_dwordx4 v[{reg+4}:{reg+7}], v9, s[32:35], s19 offen offset:32")
    A("v_lshlrev_b32 v12, 5, v6"); A("s_lshl_b32 s18, s16, 2"); A("v_add_u32 v13, s18, v12")
    S_ = 96
    for ks in range(8):
        A(f"s_waitcnt vmcnt({7 - ks + 8})")
        if ks == 0: unpack_bf16(A, P, S_, 4)
        else:
            unpack_bf16(A, P + 4*ks, S_ + 8, 4)
            for i in range(8): A(f"v_add_f32 v{S_+i}, v{S_+i}, v{S_+8+i}")
    round_bf16_inplace(A, S_, 8, 10)
    A("s_waitcnt vmcnt(0)")
    unpack_bf16(A, 24, 40, 4)
    for i in range(8): A(f"v_mul_f32 v{S_+i}, v{S_+i}, v{64+i}")
    round_bf16_inplace(A, S_, 8, 10)
    for i in range(8): A(f"v_add_f32 v{40+i}, v{40+i}, v{S_+i}")
    for i in range(4): A(f"v_cvt_pk_bf16_f32 v{24+i}, v{40+2*i}, v{41+2*i}")
    A("s_lshl_b32 s19, s17, 15"); A("s_add_u32 s19, s19, s15"); A(f"s_add_u32 s18, s19, {WS_X1}")
    A("buffer_store_dwordx4 v[24:27], v2, s[32:35], s18 offen")
    unpack_bf16(A, 24, 40, 4)
    for i in range(8): A(f"v_add_f32 v{80+i}, 1.0, v{80+i}")
    def rowsum(t, off):
        A("s_nop 1"); A(f"v_add_f32_dpp v{t}, v{t}, v{t} row_ror:8 row_mask:0xf bank_mask:0xf")
        A(f"v_mov_b32 v11, v{t}"); A("s_nop 1"); A(f"v_permlane16_swap_b32 v{t}, v11"); A("s_nop 1"); A(f"v_add_f32 v{t}, v{t}, v11")
        A(f"v_mov_b32 v11, v{t}"); A("s_nop 1"); A(f"v_permlane32_swap_b32 v{t}, v11"); A("s_nop 1"); A(f"v_add_f32 v{t}, v{t}, v11")
        A(f"ds_write_b32 v13, v{t} offset:{off}")
        A("s_waitcnt lgkmcnt(0)"); A("s_barrier")
        A(f"ds_read_b128 v[56:59], v12 offset:{off}"); A(f"ds_read_b128 v[60:63], v12 offset:{off+16}")
        A("s_waitcnt lgkmcnt(0)")
        for i in range(4): A(f"v_add_f32 v{56+i}, v{56+i}, v{60+i}")
        A("v_add_f32 v56, v56, v57"); A("v_add_f32 v58, v58, v59"); A(f"v_add_f32 v{t}, v56, v58")
    t = 10
    A(f"v_add_f32 v{t}, v40, v41")
    for i in range(2, 8): A(f"v_add_f32 v{t}, v{t}, v{40+i}")
    rowsum(t, 0)
    A(f"v_mul_f32 v{t}, {hx(-1.0/512)}, v{t}")
    for i in range(8): A(f"v_add_f32 v{40+i}, v{40+i}, v{t}")
    A(f"v_mul_f32 v{t}, v40, v40")
    for i in range(1, 8): A(f"v_fmac_f32 v{t}, v{40+i}, v{40+i}")
    rowsum(t, 256)
    A(f"v_mul_f32 v{t}, {hx(1.0/512)}, v{t}"); A(f"v_add_f32 v{t}, {hx(1e-5)}, v{t}"); A(f"v_rsq_f32 v{t}, v{t}"); A("s_nop 0")
    for i in range(8): A(f"v_mul_f32 v{40+i}, v{40+i}, v{t}")
    for i in range(8): A(f"v_fma_f32 v{40+i}, v{40+i}, v{80+i}, v{72+i}")
    for i in range(4): A(f"v_cvt_pk_bf16_f32 v{28+i}, v{40+2*i}, v{41+2*i}")
    A(f"s_add_u32 s18, s19, {WS_H2}")
    A("buffer_store_dwordx4 v[28:31], v2, s[32:35], s18 offen")
    if PROF: A("s_waitcnt vmcnt(0)")
    stamp(A, 1)
    stamp_out(A, 2, 37, 16, 0, 0)
    A.label(E); A("s_endpgm")
    return kernel_head(name) + A.text() + kernel_desc(name, 128), f"; @launch kernel={name} grid=(256,1,1) block=(512,1,1) lds=1024\n"

def gen_mlp1():
    def ids(A):
        A("s_and_b32 s14, s2, 15"); A("s_lshr_b32 s17, s2, 4")
        A("s_lshl_b32 s20, s17, 8")
        A("s_lshl_b32 s22, s14, 2"); A("s_add_u32 s22, s22, s16")
        A("s_lshl_b32 s21, s22, 15"); A(f"s_add_u32 s21, s21, {WS_H2}")
    def epi(A, ACC, vm):
        A(f"s_mul_i32 s18, s22, {112*1024}"); A("s_lshl_b32 s19, s17, 13"); A("s_add_u32 s18, s18, s19"); A(f"s_add_u32 s18, s18, {WS_HID}"); A("s_add_u32 s19, s18, 4096")
        for nb in range(4):
            a0 = ACC + 16*nb
            for i in range(16): A(f"v_mul_f32 v{32+i}, {hx(-LOG2E)}, v{a0+i}")
            for i in range(16): A(f"v_exp_f32 v{32+i}, v{32+i}")
            for i in range(16): A(f"v_add_f32 v{32+i}, 1.0, v{32+i}")
            for i in range(16): A(f"v_rcp_f32 v{32+i}, v{32+i}")
            for i in range(16): A(f"v_mul_f32 v{a0+i}, v{a0+i}, v{32+i}")
            for i in range(8): A(f"v_cvt_pk_bf16_f32 v{a0+i}, v{a0+2*i}, v{a0+2*i+1}")
            for t in range(2):
                f = 2*nb + t
                A(f"buffer_store_dwordx4 v[{a0+4*t}:{a0+4*t+3}], v2, s[32:35], s{18 + f//4} offen offset:{(f%4)*1024} {STC}")
    return gemm("mlp1_kernel", 224, 32, 1, 4, 256, True, 'w1', 3584, 512*1792*2, 4, 32, ids, 0, epi, 131072)

def gen_mlp2():
    def ids(A):
        A("s_and_b32 s14, s2, 15"); A("s_lshr_b32 s17, s2, 4")
        A("s_lshl_b32 s20, s17, 6")
        A("s_lshl_b32 s22, s14, 2"); A("s_add_u32 s22, s22, s16")
        A(f"s_mul_i32 s21, s22, {112*1024}"); A(f"s_add_u32 s21, s21, {WS_HID}")
    def epi(A, ACC, vm):
        A("v_and_b32 v4, 31, v1"); A("v_lshrrev_b32 v5, 5, v1")
        A("v_lshlrev_b32 v6, 10, v4"); A("v_lshlrev_b32 v7, 3, v5"); A("v_add_u32 v6, v6, v7")
        A("s_lshl_b32 s18, s22, 15"); A("s_lshl_b32 s19, s17, 6"); A("s_add_u32 s18, s18, s19")
        A("s_lshl_b32 s19, s22, 15"); A("s_lshl_b32 s23, s17, 11"); A("s_add_u32 s19, s19, s23"); A(f"s_add_u32 s19, s19, {WS_X1}")
        for t in range(2): A(f"buffer_load_dwordx4 v[{32+4*t}:{35+4*t}], v2, s[32:35], s19 offen offset:{1024*t}")
        A("v_lshlrev_b32 v7, 4, v5"); A("s_lshl_b32 s19, s17, 7"); A(f"s_add_u32 s19, s19, {WS_MOD + 5*2048}")
        for a_ in range(4): A(f"buffer_load_dwordx4 v[{48+4*a_}:{51+4*a_}], v7, s[32:35], s19 offen offset:{32*a_}")
        A("s_waitcnt vmcnt(0)")
        round_bf16_inplace(A, ACC, 16, 10)
        for i in range(16): A(f"v_mul_f32 v{ACC+i}, v{ACC+i}, v{48+i}")
        round_bf16_inplace(A, ACC, 16, 10)
        unpack_bf16(A, 32, 64, 8)
        for i in range(16): A(f"v_add_f32 v{ACC+i}, v{ACC+i}, v{64+i}")
        for i in range(8): A(f"v_cvt_pk_bf16_f32 v{32+i}, v{ACC+2*i}, v{ACC+2*i+1}")
        for a_ in range(4): A(f"buffer_store_dwordx2 v[{32+2*a_}:{33+2*a_}], v6, s[36:39], s18 offen offset:{16*a_}")
    return gemm("mlp2_kernel", 256, 112, 1, 1, 64, True, 'w2', 1024, 1792*512*2, 7, 32, ids, 0, epi, 114688, WD=6)

def gen_tail():
    return [gen_oproj2(), gen_red(), gen_mlp12(), gen_mlp2()]
```

```python
from gen_common import *
import gen_tail as T
WS_FLAG = 0x300000
SPIN_MAX = 30000

def sync(A, wflag, pflag, nmem, between=None, poll=True):
    L1, L2, L3 = A.new("sy"), A.new("sy"), A.new("sy")
    A("s_waitcnt vmcnt(0)"); A("s_barrier")
    A("s_cmp_lg_u32 s16, 0"); A(f"s_cbranch_scc1 {L1}")
    A("v_mov_b32 v3, 1"); A("v_mov_b32 v4, 0"); A("s_mov_b64 exec, 1")
    A(f"buffer_store_dword v3, v4, s[32:35], s{wflag} offen sc1")
    A("s_mov_b64 exec, -1")
    A.label(L1)
    if between: between()
    if not poll: return
    A("s_cmp_lg_u32 s16, 0"); A(f"s_cbranch_scc1 {L3}")
    A(f"v_min_u32 v4, {nmem-1}, v1"); A("v_lshlrev_b32 v4, 2, v4"); A("s_mov_b32 s46, 0")
    A.label(L2)
    A(f"buffer_load_dword v3, v4, s[32:35], s{pflag} offen sc1")
    A("s_waitcnt vmcnt(0)")
    A("v_cmp_ne_u32 vcc, 1, v3"); A(f"s_cbranch_vccz {L3}")
    A("s_sleep 1"); A("s_add_u32 s46, s46, 1"); A(f"s_cmp_lt_u32 s46, {SPIN_MAX}"); A(f"s_cbranch_scc1 {L2}")
    A.label(L3)
    A("s_waitcnt vmcnt(0)"); A("s_barrier")

def red4(A):
    A("v_lshrrev_b32 v4, 4, v1"); A("v_bfe_u32 v5, v1, 3, 1"); A("v_and_b32 v6, 7, v1")
    A("v_lshlrev_b32 v14, 10, v4"); A("v_lshlrev_b32 v7, 9, v5"); A("v_add_u32 v14, v14, v7"); A("v_lshlrev_b32 v7, 4, v6"); A("v_add_u32 v14, v14, v7")
    A("v_lshlrev_b32 v8, 4, v4"); A("v_lshlrev_b32 v7, 2, v5"); A("v_add_u32 v8, v8, v7")
    A("v_lshlrev_b32 v15, 1, v8"); A("v_lshlrev_b32 v7, 10, v6"); A("v_add_u32 v15, v15, v7"); A("v_lshlrev_b32 v9, 2, v8")
    A("s_lshl_b32 s15, s16, 13"); A("s_lshl_b32 s18, s61, 7"); A("s_add_u32 s15, s15, s18")
    A("s_lshl_b32 s18, s60, 18"); A("s_add_u32 s18, s18, s15"); A(f"s_add_u32 s18, s18, {WS_PART}")
    P, X, GA, SB, CB, S_, TMP, XF = 32, 96, 104, 120, 136, 152, 168, 176
    for ks in range(8):
        A("s_add_u32 s19, s18, 4096")
        A(f"buffer_load_dwordx4 v[{P+8*ks}:{P+8*ks+3}], v14, s[32:35], s18 offen sc1")
        A(f"buffer_load_dwordx4 v[{P+8*ks+4}:{P+8*ks+7}], v14, s[32:35], s19 offen sc1")
        if ks < 7: A("s_add_u32 s18, s18, 32768")
    A("s_lshl_b32 s19, s60, 15"); A("s_lshl_b32 s18, s61, 13"); A("s_add_u32 s19, s19, s18"); A("s_lshl_b32 s18, s16, 8"); A("s_add_u32 s19, s19, s18")
    for u in range(2):
        A(f"buffer_load_dwordx2 v[{X+4*u}:{X+4*u+1}], v15, s[36:39], s19 offen offset:{128*u}"); A(f"buffer_load_dwordx2 v[{X+4*u+2}:{X+4*u+3}], v15, s[36:39], s19 offen offset:{128*u+16}")
    A("s_lshl_b32 s18, s16, 9")
    for (reg, m) in ((GA, 2), (SB, 3), (CB, 4)):
        A(f"s_add_u32 s19, s18, {WS_MOD + m*2048}")
        for u in range(2):
            A(f"buffer_load_dwordx4 v[{reg+8*u}:{reg+8*u+3}], v9, s[32:35], s19 offen offset:{256*u}"); A(f"buffer_load_dwordx4 v[{reg+8*u+4}:{reg+8*u+7}], v9, s[32:35], s19 offen offset:{256*u+32}")
    A("v_lshlrev_b32 v12, 4, v6"); A("s_lshl_b32 s18, s16, 2"); A("v_add_u32 v13, s18, v12")
    A(f"v_add_u32 v12, {LDSR}, v12"); A(f"v_add_u32 v13, {LDSR}, v13")
    for ks in range(8):
        A(f"s_waitcnt vmcnt({14 - 2*ks + 16})")
        if ks == 0: unpack_bf16(A, P, S_, 8)
        else:
            for u in range(2):
                unpack_bf16(A, P + 8*ks + 4*u, TMP, 4)
                for i in range(8): A(f"v_add_f32 v{S_+8*u+i}, v{S_+8*u+i}, v{TMP+i}")
    round_bf16_inplace(A, S_, 16, 10)
    A("s_waitcnt vmcnt(0)")
    unpack_bf16(A, X, XF, 8)
    for i in range(16): A(f"v_mul_f32 v{S_+i}, v{S_+i}, v{GA+i}")
    round_bf16_inplace(A, S_, 16, 10)
    for i in range(16): A(f"v_add_f32 v{XF+i}, v{XF+i}, v{S_+i}")
    for i in range(8): A(f"v_cvt_pk_bf16_f32 v{X+i}, v{XF+2*i}, v{XF+2*i+1}")
    A("s_lshl_b32 s19, s60, 15"); A("s_add_u32 s19, s19, s15"); A(f"s_add_u32 s18, s19, {WS_X1}")
    A(f"buffer_store_dwordx4 v[{X}:{X+3}], v14, s[32:35], s18 offen sc1"); A("s_add_u32 s18, s18, 4096")
    A(f"buffer_store_dwordx4 v[{X+4}:{X+7}], v14, s[32:35], s18 offen sc1")
    unpack_bf16(A, X, XF, 8)
    for i in range(16): A(f"v_add_f32 v{CB+i}, 1.0, v{CB+i}")
    def rowsum(t, off):
        A("s_nop 1"); A(f"v_add_f32_dpp v{t}, v{t}, v{t} row_ror:8 row_mask:0xf bank_mask:0xf")
        A(f"v_mov_b32 v11, v{t}"); A("s_nop 1"); A(f"v_permlane16_swap_b32 v{t}, v11"); A("s_nop 1"); A(f"v_add_f32 v{t}, v{t}, v11")
        A(f"v_mov_b32 v11, v{t}"); A("s_nop 1"); A(f"v_permlane32_swap_b32 v{t}, v11"); A("s_nop 1"); A(f"v_add_f32 v{t}, v{t}, v11")
        A(f"ds_write_b32 v13, v{t} offset:{off}")
        A("s_waitcnt lgkmcnt(0)"); A("s_barrier")
        A(f"ds_read_b128 v[56:59], v12 offset:{off}")
        A("s_waitcnt lgkmcnt(0)")
        A("v_add_f32 v56, v56, v57"); A("v_add_f32 v58, v58, v59"); A(f"v_add_f32 v{t}, v56, v58")
    t = 10
    A(f"v_add_f32 v{t}, v{XF}, v{XF+1}")
    for i in range(2, 16): A(f"v_add_f32 v{t}, v{t}, v{XF+i}")
    rowsum(t, 0)
    A(f"v_mul_f32 v{t}, {hx(-1.0/512)}, v{t}")
    for i in range(16): A(f"v_add_f32 v{XF+i}, v{XF+i}, v{t}")
    A(f"v_mul_f32 v{t}, v{XF}, v{XF}")
    for i in range(1, 16): A(f"v_fmac_f32 v{t}, v{XF+i}, v{XF+i}")
    rowsum(t, 128)
    A(f"v_mul_f32 v{t}, {hx(1.0/512)}, v{t}"); A(f"v_add_f32 v{t}, {hx(1e-5)}, v{t}"); A(f"v_rsq_f32 v{t}, v{t}"); A("s_nop 0")
    for i in range(16): A(f"v_mul_f32 v{XF+i}, v{XF+i}, v{t}")
    for i in range(16): A(f"v_fma_f32 v{XF+i}, v{XF+i}, v{CB+i}, v{SB+i}")
    for i in range(8): A(f"v_cvt_pk_bf16_f32 v{X+i}, v{XF+2*i}, v{XF+2*i+1}")
    A(f"s_add_u32 s18, s19, {WS_H2}")
    A(f"buffer_store_dwordx4 v[{X}:{X+3}], v14, s[32:35], s18 offen sc1"); A("s_add_u32 s18, s18, 4096")
    A(f"buffer_store_dwordx4 v[{X+4}:{X+7}], v14, s[32:35], s18 offen sc1")

LDSR = 131072

def gen_fused(name="tail_kernel"):
    A = Asm(); E = f"{name}_end"
    A("s_cmp_ge_u32 s2, 256"); A(f"s_cbranch_scc1 {E}")
    stamp(A, 0)
    A(f"s_load_dwordx2 s[4:5], s[0:1], {KA['wo']}"); A(f"s_load_dwordx2 s[10:11], s[0:1], {KA['ws']}")
    A(f"s_load_dwordx2 s[6:7], s[0:1], {KA['w1']}"); A(f"s_load_dwordx2 s[8:9], s[0:1], {KA['w2']}")
    A(f"s_load_dwordx2 s[12:13], s[0:1], {KA['out']}"); A(f"s_load_dwordx2 s[56:57], s[0:1], {KA['x']}")
    A("v_lshrrev_b32 v1, 6, v0"); A("s_nop 0"); A("v_readfirstlane_b32 s16, v1"); A("v_and_b32 v1, 63, v0"); A("v_lshlrev_b32 v2, 4, v1")
    A("s_waitcnt lgkmcnt(0)")
    srd(A, 24, 4, 4096*512*2); srd(A, 32, 10, WS_SIZE)
    T.gen_oproj2(F=A, part=None)
    stamp(A, 2)
    A("s_and_b32 s58, s2, 7"); A("s_lshr_b32 s59, s2, 6"); A("s_lshl_b32 s59, s59, 3"); A("s_add_u32 s58, s58, s59")
    A("s_bfe_u32 s59, s2, 0x30003")
    A("s_lshl_b32 s60, s59, 3"); A("s_lshr_b32 s61, s58, 2"); A("s_add_u32 s60, s60, s61"); A("s_and_b32 s61, s58, 3")
    A("s_lshl_b32 s63, s59, 7"); A(f"s_add_u32 s63, s63, {WS_FLAG}"); A("s_lshl_b32 s62, s58, 2"); A("s_add_u32 s62, s62, s63")
    def w1dma():
        L = A.new("w1")
        A("s_cmp_ge_u32 s2, 224"); A(f"s_cbranch_scc1 {L}")
        srd(A, 24, 6, 512*1792*2)
        T.gen_mlp12(F=A, part='wdma')
        A.label(L)
    sync(A, 62, 63, 32, w1dma)
    stamp(A, 3)
    srd(A, 36, 56, 2048*512*2)
    red4(A)
    stamp(A, 4)
    A("s_lshr_b32 s62, s60, 2"); A("s_lshl_b32 s62, s62, 7"); A("s_and_b32 s63, s60, 3"); A("s_lshl_b32 s63, s63, 4"); A("s_add_u32 s62, s62, s63")
    A("s_lshl_b32 s63, s61, 2"); A("s_add_u32 s62, s62, s63"); A(f"s_add_u32 s62, s62, {WS_FLAG + 1024}")
    A("s_and_b32 s63, s2, 15"); A("s_lshl_b32 s63, s63, 7"); A(f"s_add_u32 s63, s63, {WS_FLAG + 1024}")
    def w2dma():
        srd(A, 24, 8, 1792*512*2)
        T.gen_mlp2(F=A, part='wdma')
    LN3, LP3 = A.new("n3"), A.new("p3")
    A("s_cmp_ge_u32 s2, 224"); A(f"s_cbranch_scc1 {LN3}")
    sync(A, 62, 63, 16)
    stamp(A, 5)
    T.gen_mlp12(F=A, part='main')
    stamp(A, 6)
    A("s_and_b32 s63, s2, 15"); A("s_lshl_b32 s63, s63, 7"); A(f"s_add_u32 s63, s63, {WS_FLAG + 3072}")
    A("s_lshr_b32 s62, s2, 4"); A("s_lshl_b32 s62, s62, 2"); A("s_add_u32 s62, s62, s63")
    A(f"s_branch {LP3}")
    A.label(LN3)
    sync(A, 62, 63, 16, None, poll=False)
    A("s_and_b32 s63, s2, 15"); A("s_lshl_b32 s63, s63, 7"); A(f"s_add_u32 s63, s63, {WS_FLAG + 3072}")
    A("s_add_u32 s62, s63, 124")
    A.label(LP3)
    sync(A, 62, 63, 14, w2dma)
    stamp(A, 7)
    srd(A, 36, 12, 2048*512*2)
    T.gen_mlp2(F=A, part='main')
    if PROF:
        A("s_waitcnt vmcnt(0)"); A("s_memtime s[82:83]")
    stamp_out(A, 8, int(os.environ.get("PWG", "37")), 16, 0, 0)
    A.label(E); A("s_endpgm")
    return kernel_head(name) + A.text() + kernel_desc(name, 512, accum=256), f"; @launch kernel={name} grid=(256,1,1) block=(256,1,1) lds={LDSR + 1024}\n"
```

```python
from gen_common import *
def gen_mod(name="mod_kernel"):
    A = Asm()
    PFM = os.environ.get("PFM", "1") == "1"
    NW = 256 if PFM else 176
    A(f"s_cmp_ge_u32 s2, {NW}"); A(f"s_cbranch_scc1 {name}_end")
    if PFM:
        A(f"s_load_dwordx2 s[28:29], s[0:1], {KA['wuk']}"); A(f"s_load_dwordx2 s[30:31], s[0:1], {KA['wuv']}")
        A("v_lshrrev_b32 v120, 6, v0"); A("v_and_b32 v121, 63, v0"); A("v_lshlrev_b32 v121, 4, v121"); A("v_lshlrev_b32 v120, 15, v120"); A("v_add_u32 v120, v120, v121")
        A("s_lshr_b32 s36, s2, 3"); A("s_lshl_b32 s36, s36, 17"); A("s_and_b32 s37, s2, 7"); A("s_lshl_b32 s37, s37, 10"); A("s_add_u32 s36, s36, s37")
        A("s_waitcnt lgkmcnt(0)")
        srd(A, 40, 28, 512*4096*2); srd(A, 44, 30, 512*4096*2)
        def pf():
            A("s_mov_b32 s37, s36")
            for i in range(4):
                A(f"buffer_load_dwordx4 v[{96+0}:{99+0}], v120, s[40:43], s37 offen"); A(f"buffer_load_dwordx4 v[{116}:{119}], v120, s[44:47], s37 offen")
                if i < 3: A("s_add_u32 s37, s37, 8192")
        A(f"s_cmp_ge_u32 s2, 176"); A(f"s_cbranch_scc0 {name}_go")
        pf()
        code_pf(A, "kv_kernel", "kv_kernel_end", 0, 8, 3, 124, 50)
        A(f"s_cmp_lg_u32 s2, 255"); A(f"s_cbranch_scc1 {name}_end")
        A(f"s_load_dwordx2 s[20:21], s[0:1], {KA['ws']}"); A("s_waitcnt lgkmcnt(0)")
        srd(A, 16, 20, WS_SIZE)
        A("v_lshlrev_b32 v2, 4, v0")
        for i in range(4): A(f"v_mov_b32 v{8+i}, 0")
        A(f"s_mov_b32 s22, {WS_FLAG}"); A("buffer_store_dwordx4 v[8:11], v2, s[16:19], s22 offen")
        A(f"s_mov_b32 s22, {WS_FLAG + 4096}"); A("buffer_store_dwordx4 v[8:11], v2, s[16:19], s22 offen")
        A("s_endpgm")
        A.label(f"{name}_go")
    A(f"s_cmp_ge_u32 s2, 48"); A(f"s_cbranch_scc1 {name}_pack")
    A(f"s_load_dwordx2 s[4:5], s[0:1], {KA['c']}")
    A(f"s_load_dwordx2 s[6:7], s[0:1], {KA['wmod']}")
    A(f"s_load_dwordx2 s[20:21], s[0:1], {KA['ws']}")
    A("s_waitcnt lgkmcnt(0)")
    srd(A, 8, 4, 1024); srd(A, 12, 6, 512*3072*2); srd(A, 16, 20, WS_SIZE)
    A("v_and_b32 v1, 7, v0"); A("v_lshrrev_b32 v2, 3, v0")
    A("v_lshlrev_b32 v3, 4, v1")
    A("s_mov_b32 s3, 6144"); A("v_mul_lo_u32 v4, v2, s3"); A("v_add_u32 v3, v3, v4")
    A("s_lshl_b32 s22, s2, 7")
    for i in range(16):
        A(f"s_add_u32 s23, s22, {32*i*6144}")
        A(f"buffer_load_dwordx4 v[{32+4*i}:{35+4*i}], v3, s[12:15], s23 offen")
    A("v_lshlrev_b32 v5, 2, v0")
    A("buffer_load_dword v6, v5, s[8:11], 0 offen")
    if PFM:
        pf(); A("s_waitcnt vmcnt(8)")
    else: A("s_waitcnt vmcnt(0)")
    unpack_bf16(A, 6, 8, 1)
    for r in (8, 9):
        A(f"v_mul_f32 v10, {hx(-LOG2E)}, v{r}"); A("v_exp_f32 v10, v10"); A("s_nop 0")
        A("v_add_f32 v10, 1.0, v10"); A("v_rcp_f32 v10, v10"); A("s_nop 0")
        A(f"v_mul_f32 v{r}, v{r}, v10")
    round_bf16_inplace(A, 8, 2, 10)
    A("v_lshlrev_b32 v5, 3, v0")
    A("ds_write_b64 v5, v[8:9]")
    A("s_waitcnt lgkmcnt(0)"); A("s_barrier")
    A("v_lshlrev_b32 v5, 2, v2")
    for i in range(16): A(f"ds_read_b32 v{12+i}, v5 offset:{128*i}")
    A("s_waitcnt lgkmcnt(0)")
    for e in range(8): A(f"v_mov_b32 v{100+e}, 0")
    for i in range(16):
        unpack_bf16(A, 32+4*i, 108, 4)
        for e in range(8): A(f"v_fmac_f32 v{100+e}, v{108+e}, v{12+i}")
    A("s_barrier")
    A("v_lshlrev_b32 v5, 5, v0")
    A("v_add_u32 v5, 2048, v5")
    A("ds_write_b128 v5, v[100:103]"); A("ds_write_b128 v5, v[104:107] offset:16")
    A("s_waitcnt lgkmcnt(0)"); A("s_barrier")
    A("v_cmp_gt_u32 vcc, 64, v0"); A("s_and_saveexec_b64 s[24:25], vcc"); A(f"s_cbranch_execz {name}_end")
    A("v_lshlrev_b32 v5, 2, v0")
    for rg in range(32): A(f"ds_read_b32 v{32+rg}, v5 offset:{2048+rg*256}")
    A("s_waitcnt lgkmcnt(0)")
    for rg in range(1, 32): A(f"v_add_f32 v32, v32, v{32+rg}")
    A("v_cvt_pk_bf16_f32 v33, v32, v32"); A("v_lshlrev_b32 v33, 16, v33")
    A("s_lshl_b32 s22, s2, 8"); A(f"s_add_u32 s22, s22, {WS_MOD}")
    A("buffer_store_dword v33, v5, s[16:19], s22 offen")
    A("s_waitcnt vmcnt(0)")
    A("s_endpgm")
    A.label(f"{name}_pack")
    A(f"s_load_dwordx2 s[4:5], s[0:1], {KA['ckv']}")
    A(f"s_load_dwordx2 s[20:21], s[0:1], {KA['ws']}")
    A("v_lshrrev_b32 v1, 6, v0"); A("s_nop 0"); A("v_readfirstlane_b32 s16, v1"); A("v_and_b32 v1, 63, v0")
    A("s_sub_u32 s3, s2, 48"); A("s_lshl_b32 s3, s3, 2"); A("s_add_u32 s3, s3, s16")
    A("s_waitcnt lgkmcnt(0)")
    srd(A, 8, 4, 2048*512*2); srd(A, 16, 20, WS_SIZE)
    A("v_and_b32 v4, 31, v1"); A("v_lshrrev_b32 v5, 5, v1"); A("v_lshlrev_b32 v4, 10, v4"); A("v_lshlrev_b32 v5, 4, v5"); A("v_add_u32 v4, v4, v5")
    A("s_lshr_b32 s22, s3, 3"); A("s_lshl_b32 s22, s22, 15"); A("s_and_b32 s23, s3, 7"); A("s_lshl_b32 s24, s23, 7"); A("s_add_u32 s24, s24, s22")
    for i in range(4): A(f"buffer_load_dwordx4 v[{8+4*i}:{11+4*i}], v4, s[8:11], s24 offen offset:{32*i}")
    A("s_lshl_b32 s23, s23, 12"); A("s_add_u32 s22, s22, s23"); A(f"s_add_u32 s22, s22, {WS_CF}")
    A("v_lshlrev_b32 v2, 4, v1")
    if PFM: pf()
    for i in range(4):
        A(f"s_waitcnt vmcnt({3 + (8 if PFM else 0)})")
        A(f"buffer_store_dwordx4 v[{8+4*i}:{11+4*i}], v2, s[16:19], s22 offen offset:{1024*i}")
    A.label(f"{name}_end"); A("s_endpgm")
    return kernel_head(name) + A.text() + kernel_desc(name, 128), f"; @launch kernel={name} grid=({NW},1,1) block=(256,1,1) lds=12288\n"
```

```python
from gen_common import *
STC = os.environ.get("STC_TL", "sc1")

def gemm(name, nwg, S, MR, NB, rowB, dmap, wkey, wstride, wbytes, C, R, ids, act, epi, lds, w_is_A=True, WD=2, F=None, part=None):
    fused = F is not None
    A = F if fused else Asm(); E = f"{name}_end"
    LF = " sc1" if fused else ""
    if not fused:
        A(f"s_cmp_ge_u32 s2, {nwg}"); A(f"s_cbranch_scc1 {E}")
        stamp(A, 0)
        A(f"s_load_dwordx2 s[4:5], s[0:1], {KA[wkey]}")
        A(f"s_load_dwordx2 s[10:11], s[0:1], {KA['ws']}")
        A(f"s_load_dwordx2 s[12:13], s[0:1], {KA['out']}")
        A("v_lshrrev_b32 v1, 6, v0"); A("s_nop 0"); A("v_readfirstlane_b32 s16, v1"); A("v_and_b32 v1, 63, v0"); A("v_lshlrev_b32 v2, 4, v1")
    ids(A)
    if not fused:
        A("s_waitcnt lgkmcnt(0)")
        srd(A, 24, 4, wbytes); srd(A, 32, 10, WS_SIZE); srd(A, 36, 12, 2048*512*2)
    RP, LP = 1024 // rowB, rowB // 16
    rows_chunk = 16 * S // C; nper = rows_chunk * rowB // 1024 // 4; spc = S // C
    lg = {4: 2, 8: 3, 16: 4}[LP]
    A(f"v_lshrrev_b32 v6, {lg}, v1"); A(f"v_and_b32 v5, {LP-1}, v1")
    if rowB == 256: A("v_lshlrev_b32 v7, 2, v6"); A("v_xor_b32 v5, v5, v7")
    if rowB == 128: A("v_lshlrev_b32 v7, 1, v6"); A("v_and_b32 v7, 4, v7"); A("v_xor_b32 v5, v5, v7")
    A("v_lshlrev_b32 v5, 4, v5")
    A(f"s_mul_i32 s18, s16, {nper*RP}"); A("v_add_u32 v7, s18, v6"); A(f"s_mov_b32 s18, {wstride}"); A("v_mul_lo_u32 v7, v7, s18")
    A("v_add_u32 v10, v7, v5")
    nv = min(4, nper)
    for j in range(1, nv): A(f"v_add_u32 v{10+j}, {j*(RP*wstride-1024)}, v10")
    vm = VM(A)
    def dma(c, j):
        if part == 'main': return
        if j % 4 == 0:
            A(f"s_mul_i32 s18, s16, {nper*1024}"); A(f"s_add_u32 s19, s20, {(c*rows_chunk + j*RP)*wstride}")
            A(f"s_add_u32 m0, s18, {c*rows_chunk*rowB + j*1024}"); A("s_nop 0")
        vm.issue(f"buffer_load_dwordx4 v{10+j%4}, s[24:27], s19 offen offset:{1024*(j%4)} lds", ('D', c))
    if part == 'wdma':
        for c in range(C):
            for j in range(nper): dma(c, j)
        return
    AB = 256
    nact = S * MR
    def aload(i):
        s_, mr = i // MR, i % MR; slot = i % R
        off = mr * act + s_ * 1024
        A(f"s_add_u32 s47, s21, {off & ~4095}")
        vm.issue(f"buffer_load_dwordx4 a[{4*slot}:{4*slot+3}], v2, s[32:35], s47 offen offset:{off & 4095}{LF}", ('A', i))
    for j in range(nper): dma(0, j)
    npre = min(R, nact)
    for i in range(min(8, npre)): aload(i)
    for j in range(nper): dma(1, j)
    win = 65536 // (16 * rowB); nwin = (S + win - 1) // win
    A("v_lshrrev_b32 v4, 4, v1"); A("v_bfe_u32 v5, v1, 2, 2"); A("v_and_b32 v6, 3, v1")
    A(f"v_lshrrev_b32 v7, 1, v4"); A(f"v_lshlrev_b32 v7, {2 if dmap else 3}, v7"); A("v_add_u32 v7, v7, v5"); A(f"v_mul_u32_u24 v7, {rowB}, v7")
    A("v_and_b32 v8, 1, v4"); A("v_lshlrev_b32 v8, 1, v8"); A("v_lshrrev_b32 v9, 1, v6"); A("v_add_u32 v8, v8, v9"); A("v_lshlrev_b32 v8, 4, v8")
    A("v_and_b32 v9, 1, v6"); A("v_lshlrev_b32 v9, 3, v9"); A("v_add_u32 v8, v8, v9"); A("v_add_u32 v7, v7, v8")
    if rowB == 128: A("v_lshrrev_b32 v5, 1, v5")
    TA = 16
    for nb in range(NB):
        if rowB == 64: A(f"v_mov_b32 v{TA+nb}, v7")
        else: A(f"v_xor_b32 v8, {nb}, v5"); A("v_lshlrev_b32 v8, 6, v8"); A(f"v_add_u32 v{TA+nb}, v7, v8")
        for wn in range(1, nwin): A(f"v_add_u32 v{TA+wn*NB+nb}, {wn*65536}, v{TA+nb}")
    sec = (8 if dmap else 4) * rowB
    WB = [32 + 4*NB*i for i in range(WD)]; ACC = 128
    lg_n = [0]; lg_tag = {}
    def wreads(s_, nb):
        ar = TA + (s_ // win) * NB + nb; off = (s_ % win) * 16 * rowB; r = WB[s_ % WD] + 4*nb
        A(f"ds_read_b64_tr_b16 v[{r}:{r+1}], v{ar} offset:{off}"); A(f"ds_read_b64_tr_b16 v[{r+2}:{r+3}], v{ar} offset:{off+sec}")
        lg_n[0] += 2; lg_tag[(s_, nb)] = lg_n[0]
    dq = [(c, j) for c in range(2, C) for j in range(nper)]
    if part == 'main': dq = []
    nxt_a = min(8, npre)
    nrd = 2 * NB
    for s_ in range(S):
        if s_ == 0:
            if part != 'main': vm.wait(('D', 0)); A("s_barrier"); stamp(A, 1)
            for q in range(WD - 1):
                for nb in range(NB): wreads(q, nb)
        if part != 'main' and (s_ + WD - 1) % spc == 0 and s_ + WD - 1 < S:
            vm.wait(('D', (s_ + WD - 1) // spc)); A("s_barrier")
        vm.wait(*[('A', s_*MR + mr) for mr in range(MR)])
        k = 0
        for nb in range(NB):
            for mr in range(MR):
                if mr == 0:
                    A(f"s_waitcnt lgkmcnt({min(15, lg_n[0] - lg_tag[(s_, nb)])})")
                slot = (s_*MR + mr) % R
                w = f"v[{WB[s_%WD]+4*nb}:{WB[s_%WD]+4*nb+3}]"; x_ = f"a[{4*slot}:{4*slot+3}]"
                d0 = ACC + 16*(mr*NB + nb); d = f"v[{d0}:{d0+15}]"
                a_, b_ = (w, x_) if w_is_A else (x_, w)
                A(f"v_mfma_f32_32x32x16_bf16 {d}, {a_}, {b_}, {'0' if s_ == 0 else d}")
                if mr == MR - 1 and s_ + WD - 1 < S: wreads(s_ + WD - 1, nb)
                if k == 0 or (MR*NB >= 4 and k == 2):
                    lim = min(nact, max(npre, (s_ - 1) * MR + MR - 1 + R + 1 - 0) if s_ >= 1 else npre)
                    lim = min(nact, (s_ * MR) + R) if s_ >= 1 else min(nact, npre)
                    for _ in range(2 if nxt_a < npre else MR):
                        if nxt_a < lim: aload(nxt_a); nxt_a += 1
                if k == MR*NB - 1 and dq:
                    dma(*dq.pop(0))
                    if nper > spc and dq: dma(*dq.pop(0))
                k += 1
    assert nxt_a == nact and not dq, (nxt_a, nact, dq)
    if not fused: stamp(A, 2)
    A("s_nop 7"); A("s_nop 7")
    epi(A, ACC, vm)
    if fused: return
    if PROF: A("s_waitcnt vmcnt(0)")
    stamp(A, 3)
    stamp_out(A, 4, 37, 16, 0, 0)
    A.label(E); A("s_endpgm")
    return kernel_head(name) + A.text() + kernel_desc(name, 512, accum=256), f"; @launch kernel={name} grid=({nwg},1,1) block=(256,1,1) lds={lds}\n"

def gemm2(name, nwg, S, MR, phases, wkey, wstride, wbytes, C, ids, act, epi_addr, epi_block, lds, D=5, prof_wg=37, F=None, part=None):
    NB = 4; rowB = 256
    fused = F is not None
    A = F if fused else Asm(); E = f"{name}_end"
    LF = " sc1" if (fused and part == 'main') else ""
    if not fused:
        A(f"s_cmp_ge_u32 s2, {nwg}"); A(f"s_cbranch_scc1 {E}")
        stamp(A, 0)
        A(f"s_load_dwordx2 s[4:5], s[0:1], {KA[wkey]}")
        A(f"s_load_dwordx2 s[10:11], s[0:1], {KA['ws']}")
        A("v_lshrrev_b32 v1, 6, v0"); A("s_nop 0"); A("v_readfirstlane_b32 s16, v1"); A("v_and_b32 v1, 63, v0"); A("v_lshlrev_b32 v2, 4, v1")
    ids(A)
    rows_chunk = 16 * S // C; nper = rows_chunk * rowB // 1024 // 4; spc = S // C
    A("v_lshrrev_b32 v6, 4, v1"); A("v_and_b32 v5, 15, v1"); A("v_lshlrev_b32 v7, 2, v6"); A("v_xor_b32 v5, v5, v7"); A("v_lshlrev_b32 v5, 4, v5")
    A(f"s_mul_i32 s18, s16, {nper*4}"); A("v_add_u32 v7, s18, v6"); A(f"s_mov_b32 s18, {wstride}"); A("v_mul_lo_u32 v7, v7, s18")
    A("v_add_u32 v10, v7, v5")
    for j in range(1, min(4, nper)): A(f"v_add_u32 v{10+j}, {j*(4*wstride-1024)}, v10")
    if not fused:
        A("s_waitcnt lgkmcnt(0)")
        srd(A, 24, 4, wbytes); srd(A, 32, 10, WS_SIZE)
    vm = VM(A)
    def dma(c, j):
        if part == 'main': return
        if j % 4 == 0:
            A(f"s_mul_i32 s18, s16, {nper*1024}"); A(f"s_add_u32 s19, s20, {(c*rows_chunk + j*4)*wstride}")
            A(f"s_add_u32 m0, s18, {c*rows_chunk*rowB + j*1024}"); A("s_nop 0")
        vm.issue(f"buffer_load_dwordx4 v{10+j%4}, s[24:27], s19 offen offset:{1024*(j%4)} lds", ('D', c))
    if part == 'wdma':
        for c in range(C):
            for j in range(nper): dma(c, j)
        return
    nact = S * MR
    def aload(i):
        s_, mr = i // MR, i % MR
        off = mr * act + s_ * 1024
        A(f"s_add_u32 s47, s21, {off & ~4095}")
        vm.issue(f"buffer_load_dwordx4 a[{4*i}:{4*i+3}], v2, s[32:35], s47 offen offset:{off & 4095}{LF}", ('A', i))
    for j in range(nper): dma(0, j)
    for i in range(spc * MR): aload(i)
    for j in range(nper): dma(1, j)
    rest = []
    for c in range(1, C):
        if c >= 2 and part != 'main': rest += [('d', c, j) for j in range(nper)]
        rest += [('a', i) for i in range(c*spc*MR, (c+1)*spc*MR)]
    A("v_lshrrev_b32 v4, 4, v1"); A("v_bfe_u32 v5, v1, 2, 2"); A("v_and_b32 v6, 3, v1")
    A("v_lshrrev_b32 v7, 1, v4"); A("v_lshlrev_b32 v7, 2, v7"); A("v_add_u32 v7, v7, v5"); A(f"v_mul_u32_u24 v7, {rowB}, v7")
    A("v_and_b32 v8, 1, v4"); A("v_lshlrev_b32 v8, 1, v8"); A("v_lshrrev_b32 v9, 1, v6"); A("v_add_u32 v8, v8, v9"); A("v_lshlrev_b32 v8, 4, v8")
    A("v_and_b32 v9, 1, v6"); A("v_lshlrev_b32 v9, 3, v9"); A("v_add_u32 v8, v8, v9"); A("v_add_u32 v7, v7, v8")
    nwin = (S + 15) // 16; TA = 16
    for nb in range(NB):
        A(f"v_xor_b32 v8, {nb}, v5"); A("v_lshlrev_b32 v8, 6, v8"); A(f"v_add_u32 v{TA+nb}, v7, v8")
        for wn in range(1, nwin): A(f"v_add_u32 v{TA+wn*NB+nb}, {wn*65536}, v{TA+nb}")
    epi_addr(A)
    ACC = 128; RING = 8; WB = 32
    uses = [(s_, nb) for ph in phases for s_ in range(S) for nb in ph]
    lg_n = [0]; lg_tag = {}; landed = set()
    def wread(i):
        s_, nb = uses[i]
        c = s_ // spc
        if c not in landed and part != 'main':
            vm.wait(('D', c)); A("s_barrier"); landed.add(c)
            if c == 0: stamp(A, 1)
        ar = TA + (s_ // 16) * NB + nb; off = (s_ % 16) * 16 * rowB; r = WB + 4*(i % RING)
        A(f"ds_read_b64_tr_b16 v[{r}:{r+1}], v{ar} offset:{off}"); A(f"ds_read_b64_tr_b16 v[{r+2}:{r+3}], v{ar} offset:{off+8*rowB}")
        lg_n[0] += 2; lg_tag[i] = lg_n[0]
    for i in range(D): wread(i)
    epq = []
    done_nb = []
    phase_end = {}
    k = 0
    for ph in phases:
        k += S * len(ph); phase_end[k - 1] = ph
    hold = 0
    nmf = len(uses) * MR; mi = 0
    for i, (s_, nb) in enumerate(uses):
        first_phase = i < S * len(phases[0])
        if first_phase: vm.wait(*[('A', s_*MR + mr) for mr in range(MR)])
        A(f"s_waitcnt lgkmcnt({min(15, lg_n[0] - lg_tag[i])})")
        for mr in range(MR):
            w = f"v[{WB+4*(i%RING)}:{WB+4*(i%RING)+3}]"; x_ = f"a[{4*(s_*MR+mr)}:{4*(s_*MR+mr)+3}]"
            d0 = ACC + 16*(mr*NB + nb); d = f"v[{d0}:{d0+15}]"
            A(f"v_mfma_f32_32x32x16_bf16 {d}, {w}, {x_}, {'0' if s_ == 0 else d}")
            mi += 1
            if mr == MR - 1 and i + D < len(uses): wread(i + D)
            if rest:
                for _ in range(2 if MR == 2 else 1):
                    if rest:
                        op = rest.pop(0)
                        if op[0] == 'd': dma(op[1], op[2])
                        else: aload(op[1])
            elif hold > 0: hold -= 1
            elif epq:
                left = min(j for j in phase_end if j >= i) - i + 1
                per = max(1, min(5, -(-len(epq) // max(1, left * MR - 3))))
                n = 0
                while epq and n < per:
                    it = epq.pop(0)
                    if it[0] == 's':
                        vm.issue(it[1]); n += 2
                    else: A(it[1]); n += 1
        if i in phase_end:
            assert not rest
            for nb2 in phase_end[i]:
                for mr in range(MR): epq += epi_block(ACC + 16*(mr*NB + nb2), mr, nb2)
            hold = 3
    if not fused: stamp(A, 2)
    A("s_nop 7"); A("s_nop 7")
    for it in epq:
        if it[0] == 's': vm.issue(it[1])
        else: A(it[1])
    if fused: return
    if PROF: A("s_waitcnt vmcnt(0)")
    stamp(A, 3)
    stamp_out(A, 4, prof_wg, 16, 0, 0)
    A.label(E); A("s_endpgm")
    return kernel_head(name) + A.text() + kernel_desc(name, 512, accum=256), f"; @launch kernel={name} grid=({nwg},1,1) block=(256,1,1) lds={lds}\n"

def gen_oproj2(F=None, part=None):
    def ids(A):
        A("s_and_b32 s15, s2, 7"); A("s_bfe_u32 s14, s2, 0x30003"); A("s_lshr_b32 s17, s2, 6")
        A("s_lshl_b32 s20, s15, 19"); A("s_lshl_b32 s18, s17, 8"); A("s_add_u32 s20, s20, s18")
        A("s_lshl_b32 s21, s14, 3"); A("s_lshl_b32 s18, s16, 1"); A("s_add_u32 s21, s21, s18")
        A("s_mov_b32 s22, s21")
        A("s_lshl_b32 s21, s21, 18"); A("s_lshl_b32 s18, s15, 15"); A("s_add_u32 s21, s21, s18"); A(f"s_add_u32 s21, s21, {WS_CTX}")
    def epi_addr(A):
        A("s_lshl_b32 s40, s22, 18"); A("s_lshl_b32 s41, s15, 15"); A("s_add_u32 s40, s40, s41"); A("s_lshl_b32 s41, s17, 13"); A("s_add_u32 s40, s40, s41")
        A(f"s_add_u32 s40, s40, {WS_PART}"); A("s_add_u32 s41, s40, 4096")
        A(f"s_add_u32 s42, s40, {1 << 18}"); A("s_add_u32 s43, s42, 4096")
    def epi_block(a0, mr, nb):
        it = []
        for t in range(2):
            for i in range(4*t, 4*t+4): it.append(('v', f"v_cvt_pk_bf16_f32 v{a0+i}, v{a0+2*i}, v{a0+2*i+1}"))
        for t in range(2):
            f = 2*nb + t
            it.append(('s', f"buffer_store_dwordx4 v[{a0+4*t}:{a0+4*t+3}], v2, s[32:35], s{40 + 2*mr + f//4} offen offset:{(f%4)*1024} {STC}"))
        return it
    return gemm2("oproj_kernel", 256, 32, 2, [(0, 1), (2,), (3,)], 'wo', 1024, 4096*512*2, 4, ids, 262144, epi_addr, epi_block, 131072, F=F, part=part)

def gen_mlp12(F=None, part=None):
    def ids(A):
        A("s_and_b32 s14, s2, 15"); A("s_lshr_b32 s17, s2, 4")
        A("s_lshl_b32 s20, s17, 8")
        A("s_lshl_b32 s22, s14, 2"); A("s_add_u32 s22, s22, s16")
        A("s_lshl_b32 s21, s22, 15"); A(f"s_add_u32 s21, s21, {WS_H2}")
    def epi_addr(A):
        A(f"s_mul_i32 s40, s22, {112*1024}"); A("s_lshl_b32 s41, s17, 13"); A("s_add_u32 s40, s40, s41"); A(f"s_add_u32 s40, s40, {WS_HID}"); A("s_add_u32 s41, s40, 4096")
    def epi_block(a0, mr, nb):
        it = []; T = 64 + 16 * (nb % 2)
        for i in range(16): it.append(('v', f"v_mul_f32 v{T+i}, {hx(-LOG2E)}, v{a0+i}"))
        for i in range(16): it.append(('v', f"v_exp_f32 v{T+i}, v{T+i}"))
        for i in range(16): it.append(('v', f"v_add_f32 v{T+i}, 1.0, v{T+i}"))
        for i in range(16): it.append(('v', f"v_rcp_f32 v{T+i}, v{T+i}"))
        for i in range(16): it.append(('v', f"v_mul_f32 v{a0+i}, v{a0+i}, v{T+i}"))
        for i in range(8): it.append(('v', f"v_cvt_pk_bf16_f32 v{a0+i}, v{a0+2*i}, v{a0+2*i+1}"))
        for t in range(2):
            f = 2*nb + t
            it.append(('s', f"buffer_store_dwordx4 v[{a0+4*t}:{a0+4*t+3}], v2, s[32:35], s{40 + f//4} offen offset:{(f%4)*1024} {STC}"))
        return it
    return gemm2("mlp1_kernel", 224, 32, 1, [(0, 1), (2,), (3,)], 'w1', 3584, 512*1792*2, 4, ids, 0, epi_addr, epi_block, 131072, D=6, F=F, part=part)

def gen_oproj():
    def ids(A):
        A("s_and_b32 s15, s2, 7"); A("s_bfe_u32 s14, s2, 0x30003"); A("s_lshr_b32 s17, s2, 6")
        A("s_lshl_b32 s20, s15, 19"); A("s_lshl_b32 s18, s17, 8"); A("s_add_u32 s20, s20, s18")
        A("s_lshl_b32 s21, s14, 3"); A("s_lshl_b32 s18, s16, 1"); A("s_add_u32 s21, s21, s18")
        A("s_mov_b32 s22, s21")
        A("s_lshl_b32 s21, s21, 18"); A("s_lshl_b32 s18, s15, 15"); A("s_add_u32 s21, s21, s18"); A(f"s_add_u32 s21, s21, {WS_CTX}")
    def epi(A, ACC, vm):
        A("s_lshl_b32 s18, s22, 18"); A("s_lshl_b32 s19, s15, 15"); A("s_add_u32 s18, s18, s19"); A("s_lshl_b32 s19, s17, 13"); A("s_add_u32 s18, s18, s19")
        A(f"s_add_u32 s18, s18, {WS_PART}"); A("s_add_u32 s19, s18, 4096")
        A(f"s_add_u32 s40, s18, {1 << 18}"); A("s_add_u32 s41, s40, 4096")
        for mr in range(2):
            for nb in range(4):
                a0 = ACC + 16*(mr*4 + nb)
                for i in range(8): A(f"v_cvt_pk_bf16_f32 v{a0+i}, v{a0+2*i}, v{a0+2*i+1}")
                for t in range(2):
                    f = 2*nb + t; sb = (18 if mr == 0 else 40) + f // 4
                    A(f"buffer_store_dwordx4 v[{a0+4*t}:{a0+4*t+3}], v2, s[32:35], s{sb} offen offset:{(f%4)*1024} {STC}")
    return gemm("oproj_kernel", 256, 32, 2, 4, 256, True, 'wo', 1024, 4096*512*2, 4, 32, ids, 262144, epi, 131072)

def gen_red():
    name = "red_kernel"; A = Asm(); E = f"{name}_end"
    A(f"s_cmp_ge_u32 s2, 256"); A(f"s_cbranch_scc1 {E}")
    stamp(A, 0)
    A(f"s_load_dwordx2 s[4:5], s[0:1], {KA['x']}"); A(f"s_load_dwordx2 s[10:11], s[0:1], {KA['ws']}")
    A("v_lshrrev_b32 v1, 6, v0"); A("s_nop 0"); A("v_readfirstlane_b32 s16, v1"); A("v_and_b32 v1, 63, v0")
    A("s_lshr_b32 s17, s2, 2"); A("s_and_b32 s14, s2, 3")
    A("v_lshrrev_b32 v4, 4, v1"); A("v_bfe_u32 v5, v1, 3, 1"); A("v_and_b32 v6, 7, v1")
    A("v_lshlrev_b32 v2, 10, v4"); A("v_lshlrev_b32 v7, 9, v5"); A("v_add_u32 v2, v2, v7"); A("v_lshlrev_b32 v7, 4, v6"); A("v_add_u32 v2, v2, v7")
    A("v_lshlrev_b32 v8, 4, v4"); A("v_lshlrev_b32 v7, 2, v5"); A("v_add_u32 v8, v8, v7")
    A("v_lshlrev_b32 v3, 1, v8"); A("v_lshlrev_b32 v7, 10, v6"); A("v_add_u32 v3, v3, v7"); A("v_lshlrev_b32 v9, 2, v8")
    A("s_lshl_b32 s15, s16, 12"); A("s_lshl_b32 s18, s14, 7"); A("s_add_u32 s15, s15, s18")
    A("s_waitcnt lgkmcnt(0)")
    srd(A, 20, 4, 2048*512*2); srd(A, 32, 10, WS_SIZE)
    A("s_lshl_b32 s18, s17, 18"); A("s_add_u32 s18, s18, s15"); A(f"s_add_u32 s18, s18, {WS_PART}")
    P = 32
    for ks in range(8):
        A(f"buffer_load_dwordx4 v[{P+4*ks}:{P+4*ks+3}], v2, s[32:35], s18 offen")
        if ks < 7: A("s_add_u32 s18, s18, 32768")
    A("s_lshl_b32 s19, s17, 15"); A("s_lshl_b32 s18, s14, 13"); A("s_add_u32 s19, s19, s18"); A("s_lshl_b32 s18, s16, 7"); A("s_add_u32 s19, s19, s18")
    A("buffer_load_dwordx2 v[24:25], v3, s[20:23], s19 offen"); A("buffer_load_dwordx2 v[26:27], v3, s[20:23], s19 offen offset:16")
    A("s_lshl_b32 s18, s16, 8")
    for (reg, m) in ((64, 2), (72, 3), (80, 4)):
        A(f"s_add_u32 s19, s18, {WS_MOD + m*2048}")
        A(f"buffer_load_dwordx4 v[{reg}:{reg+3}], v9, s[32:35], s19 offen"); A(f"buffer_load_dwordx4 v[{reg+4}:{reg+7}], v9, s[32:35], s19 offen offset:32")
    A("v_lshlrev_b32 v12, 5, v6"); A("s_lshl_b32 s18, s16, 2"); A("v_add_u32 v13, s18, v12")
    S_ = 96
    for ks in range(8):
        A(f"s_waitcnt vmcnt({7 - ks + 8})")
        if ks == 0: unpack_bf16(A, P, S_, 4)
        else:
            unpack_bf16(A, P + 4*ks, S_ + 8, 4)
            for i in range(8): A(f"v_add_f32 v{S_+i}, v{S_+i}, v{S_+8+i}")
    round_bf16_inplace(A, S_, 8, 10)
    A("s_waitcnt vmcnt(0)")
    unpack_bf16(A, 24, 40, 4)
    for i in range(8): A(f"v_mul_f32 v{S_+i}, v{S_+i}, v{64+i}")
    round_bf16_inplace(A, S_, 8, 10)
    for i in range(8): A(f"v_add_f32 v{40+i}, v{40+i}, v{S_+i}")
    for i in range(4): A(f"v_cvt_pk_bf16_f32 v{24+i}, v{40+2*i}, v{41+2*i}")
    A("s_lshl_b32 s19, s17, 15"); A("s_add_u32 s19, s19, s15"); A(f"s_add_u32 s18, s19, {WS_X1}")
    A("buffer_store_dwordx4 v[24:27], v2, s[32:35], s18 offen")
    unpack_bf16(A, 24, 40, 4)
    for i in range(8): A(f"v_add_f32 v{80+i}, 1.0, v{80+i}")
    def rowsum(t, off):
        A("s_nop 1"); A(f"v_add_f32_dpp v{t}, v{t}, v{t} row_ror:8 row_mask:0xf bank_mask:0xf")
        A(f"v_mov_b32 v11, v{t}"); A("s_nop 1"); A(f"v_permlane16_swap_b32 v{t}, v11"); A("s_nop 1"); A(f"v_add_f32 v{t}, v{t}, v11")
        A(f"v_mov_b32 v11, v{t}"); A("s_nop 1"); A(f"v_permlane32_swap_b32 v{t}, v11"); A("s_nop 1"); A(f"v_add_f32 v{t}, v{t}, v11")
        A(f"ds_write_b32 v13, v{t} offset:{off}")
        A("s_waitcnt lgkmcnt(0)"); A("s_barrier")
        A(f"ds_read_b128 v[56:59], v12 offset:{off}"); A(f"ds_read_b128 v[60:63], v12 offset:{off+16}")
        A("s_waitcnt lgkmcnt(0)")
        for i in range(4): A(f"v_add_f32 v{56+i}, v{56+i}, v{60+i}")
        A("v_add_f32 v56, v56, v57"); A("v_add_f32 v58, v58, v59"); A(f"v_add_f32 v{t}, v56, v58")
    t = 10
    A(f"v_add_f32 v{t}, v40, v41")
    for i in range(2, 8): A(f"v_add_f32 v{t}, v{t}, v{40+i}")
    rowsum(t, 0)
    A(f"v_mul_f32 v{t}, {hx(-1.0/512)}, v{t}")
    for i in range(8): A(f"v_add_f32 v{40+i}, v{40+i}, v{t}")
    A(f"v_mul_f32 v{t}, v40, v40")
    for i in range(1, 8): A(f"v_fmac_f32 v{t}, v{40+i}, v{40+i}")
    rowsum(t, 256)
    A(f"v_mul_f32 v{t}, {hx(1.0/512)}, v{t}"); A(f"v_add_f32 v{t}, {hx(1e-5)}, v{t}"); A(f"v_rsq_f32 v{t}, v{t}"); A("s_nop 0")
    for i in range(8): A(f"v_mul_f32 v{40+i}, v{40+i}, v{t}")
    for i in range(8): A(f"v_fma_f32 v{40+i}, v{40+i}, v{80+i}, v{72+i}")
    for i in range(4): A(f"v_cvt_pk_bf16_f32 v{28+i}, v{40+2*i}, v{41+2*i}")
    A(f"s_add_u32 s18, s19, {WS_H2}")
    A("buffer_store_dwordx4 v[28:31], v2, s[32:35], s18 offen")
    if PROF: A("s_waitcnt vmcnt(0)")
    stamp(A, 1)
    stamp_out(A, 2, 37, 16, 0, 0)
    A.label(E); A("s_endpgm")
    return kernel_head(name) + A.text() + kernel_desc(name, 128), f"; @launch kernel={name} grid=(256,1,1) block=(512,1,1) lds=1024\n"

def gen_mlp1():
    def ids(A):
        A("s_and_b32 s14, s2, 15"); A("s_lshr_b32 s17, s2, 4")
        A("s_lshl_b32 s20, s17, 8")
        A("s_lshl_b32 s22, s14, 2"); A("s_add_u32 s22, s22, s16")
        A("s_lshl_b32 s21, s22, 15"); A(f"s_add_u32 s21, s21, {WS_H2}")
    def epi(A, ACC, vm):
        A(f"s_mul_i32 s18, s22, {112*1024}"); A("s_lshl_b32 s19, s17, 13"); A("s_add_u32 s18, s18, s19"); A(f"s_add_u32 s18, s18, {WS_HID}"); A("s_add_u32 s19, s18, 4096")
        for nb in range(4):
            a0 = ACC + 16*nb
            for i in range(16): A(f"v_mul_f32 v{32+i}, {hx(-LOG2E)}, v{a0+i}")
            for i in range(16): A(f"v_exp_f32 v{32+i}, v{32+i}")
            for i in range(16): A(f"v_add_f32 v{32+i}, 1.0, v{32+i}")
            for i in range(16): A(f"v_rcp_f32 v{32+i}, v{32+i}")
            for i in range(16): A(f"v_mul_f32 v{a0+i}, v{a0+i}, v{32+i}")
            for i in range(8): A(f"v_cvt_pk_bf16_f32 v{a0+i}, v{a0+2*i}, v{a0+2*i+1}")
            for t in range(2):
                f = 2*nb + t
                A(f"buffer_store_dwordx4 v[{a0+4*t}:{a0+4*t+3}], v2, s[32:35], s{18 + f//4} offen offset:{(f%4)*1024} {STC}")
    return gemm("mlp1_kernel", 224, 32, 1, 4, 256, True, 'w1', 3584, 512*1792*2, 4, 32, ids, 0, epi, 131072)

def gen_mlp2(F=None, part=None):
    def ids(A):
        A("s_and_b32 s14, s2, 15"); A("s_lshr_b32 s17, s2, 4")
        A("s_lshl_b32 s20, s17, 6")
        A("s_lshl_b32 s22, s14, 2"); A("s_add_u32 s22, s22, s16")
        A(f"s_mul_i32 s21, s22, {112*1024}"); A(f"s_add_u32 s21, s21, {WS_HID}")
    def epi(A, ACC, vm):
        A("v_and_b32 v4, 31, v1"); A("v_lshrrev_b32 v5, 5, v1")
        A("v_lshlrev_b32 v6, 10, v4"); A("v_lshlrev_b32 v7, 3, v5"); A("v_add_u32 v6, v6, v7")
        A("s_lshl_b32 s18, s22, 15"); A("s_lshl_b32 s19, s17, 6"); A("s_add_u32 s18, s18, s19")
        A("s_lshl_b32 s19, s22, 15"); A("s_lshl_b32 s23, s17, 11"); A("s_add_u32 s19, s19, s23"); A(f"s_add_u32 s19, s19, {WS_X1}")
        for t in range(2): A(f"buffer_load_dwordx4 v[{32+4*t}:{35+4*t}], v2, s[32:35], s19 offen offset:{1024*t}{' sc1' if F is not None else ''}")
        A("v_lshlrev_b32 v7, 4, v5"); A("s_lshl_b32 s19, s17, 7"); A(f"s_add_u32 s19, s19, {WS_MOD + 5*2048}")
        for a_ in range(4): A(f"buffer_load_dwordx4 v[{48+4*a_}:{51+4*a_}], v7, s[32:35], s19 offen offset:{32*a_}")
        A("s_waitcnt vmcnt(0)")
        round_bf16_inplace(A, ACC, 16, 10)
        for i in range(16): A(f"v_mul_f32 v{ACC+i}, v{ACC+i}, v{48+i}")
        round_bf16_inplace(A, ACC, 16, 10)
        unpack_bf16(A, 32, 64, 8)
        for i in range(16): A(f"v_add_f32 v{ACC+i}, v{ACC+i}, v{64+i}")
        for i in range(8): A(f"v_cvt_pk_bf16_f32 v{32+i}, v{ACC+2*i}, v{ACC+2*i+1}")
        for a_ in range(4): A(f"buffer_store_dwordx2 v[{32+2*a_}:{33+2*a_}], v6, s[36:39], s18 offen offset:{16*a_}")
    return gemm("mlp2_kernel", 256, 112, 1, 1, 64, True, 'w2', 1024, 1792*512*2, 7, 32, ids, 0, epi, 114688, WD=6, F=F, part=part)

def gen_tail():
    if os.environ.get("FUSE", "1") == "1":
        import gen_fused
        return [gen_fused.gen_fused()]
    return [gen_oproj2(), gen_red(), gen_mlp12(), gen_mlp2()]
```

```python
import os
from asmlib import *
KA = dict(x=0, ckv=8, wq=16, wuk=24, wuv=32, wo=40, bx=48, w1=56, w2=64, c=72, wmod=80, out=88, dbg=96, ws=104)
WS_MOD  = 0x0
WS_H1   = 0x100000
WS_CF   = 0x400000
WS_KV   = 0x1000000
WS_CTX  = 0x3000000
WS_PART = 0x4000000
WS_X1   = 0x5000000
WS_H2   = 0x5200000
WS_HID  = 0x5400000
WS_SIZE = 0x10000000
WSB = int(os.environ.get('WSB', '0'), 0)
WS_MOD += WSB; WS_H1 += WSB; WS_CF += WSB; WS_KV += WSB; WS_CTX += WSB; WS_PART += WSB; WS_X1 += WSB; WS_H2 += WSB; WS_HID += WSB
WS_FLAG = 0x300000 + WSB
LOG2E = 1.4426950408889634

import struct
def f2u(x): return struct.unpack("<I", struct.pack("<f", x))[0]
def hx(x): return "0x%08x" % f2u(x)

def wave_sum(A, vr, sdst):
    for sh in (1, 2, 4, 8):
        A("s_nop 1")
        A(f"v_add_f32_dpp v{vr}, v{vr}, v{vr} row_shr:{sh} row_mask:0xf bank_mask:0xf bound_ctrl:0")
    A("s_nop 1")
    A(f"v_add_f32_dpp v{vr}, v{vr}, v{vr} row_bcast:15 row_mask:0xa bank_mask:0xf")
    A("s_nop 1")
    A(f"v_add_f32_dpp v{vr}, v{vr}, v{vr} row_bcast:31 row_mask:0xc bank_mask:0xf")
    A("s_nop 1")
    A(f"v_readlane_b32 s{sdst}, v{vr}, 63")
    A("s_nop 3")

def unpack_bf16(A, src, dst, n):
    for i in range(n):
        A(f"v_lshlrev_b32 v{dst+2*i}, 16, v{src+i}")
        A(f"v_and_b32 v{dst+2*i+1}, 0xffff0000, v{src+i}")

def layernorm_row(A, xf, n, gam, bet, st, tmp):
    N = 64 * n
    A(f"v_add_f32 v{tmp}, v{xf}, v{xf+1}")
    for i in range(2, n): A(f"v_add_f32 v{tmp}, v{tmp}, v{xf+i}")
    wave_sum(A, tmp, st)
    A(f"v_mov_b32 v{tmp}, {hx(-1.0/N)}")
    A(f"v_mul_f32 v{tmp}, s{st}, v{tmp}")
    for i in range(n): A(f"v_add_f32 v{xf+i}, v{xf+i}, v{tmp}")
    A(f"v_mul_f32 v{tmp}, v{xf}, v{xf}")
    for i in range(1, n): A(f"v_fmac_f32 v{tmp}, v{xf+i}, v{xf+i}")
    wave_sum(A, tmp, st)
    A(f"v_mov_b32 v{tmp}, {hx(1.0/N)}")
    A(f"v_mul_f32 v{tmp}, s{st}, v{tmp}")
    A(f"v_add_f32 v{tmp}, {hx(1e-5)}, v{tmp}")
    A(f"v_rsq_f32 v{tmp}, v{tmp}")
    A("s_nop 0")
    for i in range(n): A(f"v_mul_f32 v{xf+i}, v{xf+i}, v{tmp}")
    for i in range(n): A(f"v_fma_f32 v{xf+i}, v{xf+i}, v{gam+i}, v{bet+i}")

def round_bf16_inplace(A, r, n, tmp):
    for i in range(0, n, 2):
        A(f"v_cvt_pk_bf16_f32 v{tmp}, v{r+i}, v{r+i+1}")
        A(f"v_lshlrev_b32 v{r+i}, 16, v{tmp}")
        A(f"v_and_b32 v{r+i+1}, 0xffff0000, v{tmp}")

import os
PROF = os.environ.get("PROF", "") != ""
RT_ON = [False]
def stamp_dump(A, n, wave_sreg, wave):
    if not PROF: return
    L = A.new("pa")
    A("s_waitcnt lgkmcnt(0)")
    A(f"s_cmp_lg_u32 s{wave_sreg}, {wave}"); A(f"s_cbranch_scc1 {L}")
    A(f"s_load_dwordx2 s[76:77], s[0:1], {KA['ws']}"); A("s_waitcnt lgkmcnt(0)")
    A("s_and_b32 s77, s77, 0xffff"); A(f"s_mov_b32 s78, {WS_SIZE}"); A("s_mov_b32 s79, 0x20000")
    A(f"s_lshl_b32 s75, s2, 5"); A(f"s_add_u32 s75, s75, {WS_PROF + 4*8192}")
    A("v_mov_b32 v1, 0")
    for i in range(n): A(f"v_mov_b32 v{4+i}, s{80+2*i}")
    A("buffer_store_dwordx4 v[4:7], v1, s[76:79], s75 offen"); A("buffer_store_dwordx4 v[8:11], v1, s[76:79], s75 offen offset:16")
    A("s_waitcnt vmcnt(0)")
    A.label(L)
def stamp(A, i):
    if PROF:
        A(f"{'s_memrealtime' if os.environ.get('RT') == '1' and RT_ON[0] else 's_memtime'} s[{80+2*i}:{81+2*i}]")
        if i == 0: A("s_memrealtime s[96:97]")
def stamp_out(A, n, wg, wave_sreg, wave, base=0):
    if not PROF: return
    L = A.new("po")
    A("s_waitcnt lgkmcnt(0)")
    A(f"s_cmp_lg_u32 s2, {wg}"); A(f"s_cbranch_scc1 {L}")
    A(f"s_cmp_lg_u32 s{wave_sreg}, {wave}"); A(f"s_cbranch_scc1 {L}")
    A(f"s_load_dwordx2 s[76:77], s[0:1], {KA['dbg']}"); A("s_waitcnt lgkmcnt(0)")
    A("s_and_b32 s77, s77, 0xffff"); A("s_mov_b32 s78, 256"); A("s_mov_b32 s79, 0x20000")
    A("v_mov_b32 v1, 0")
    for i in range(1, n):
        A(f"s_sub_u32 s75, s{80+2*i}, s80"); A("v_mov_b32 v0, s75")
        A(f"buffer_store_dword v0, v1, s[76:79], 0 offen offset:{4*(base+i)}")
    A("s_memrealtime s[98:99]"); A("s_waitcnt lgkmcnt(0)")
    A("s_sub_u32 s75, s98, s96"); A("v_mov_b32 v0, s75")
    A(f"buffer_store_dword v0, v1, s[76:79], 0 offen offset:{4*base}")
    A("s_waitcnt vmcnt(0)")
    A.label(L)

WS_PROF = 0xF000000
def stamp_all(A, kidx, wave_sreg, wave):
    if not PROF: return
    L = A.new("pa")
    A(f"s_cmp_lg_u32 s{wave_sreg}, {wave}"); A(f"s_cbranch_scc1 {L}")
    A(f"s_load_dwordx2 s[76:77], s[0:1], {KA['ws']}"); A("s_memrealtime s[98:99]"); A("s_memtime s[94:95]"); A("s_waitcnt lgkmcnt(0)")
    A("s_and_b32 s77, s77, 0xffff"); A(f"s_mov_b32 s78, {WS_SIZE}"); A("s_mov_b32 s79, 0x20000")
    A(f"s_lshl_b32 s75, s2, 4"); A(f"s_add_u32 s75, s75, {WS_PROF + kidx*8192}")
    A("v_mov_b32 v1, 0")
    A("v_mov_b32 v4, s96"); A("v_mov_b32 v5, s98"); A("s_sub_u32 s74, s94, s80"); A("v_mov_b32 v6, s74"); A("s_getreg_b32 s74, hwreg(HW_REG_XCC_ID)"); A("v_mov_b32 v7, s74")
    A("buffer_store_dwordx4 v[4:7], v1, s[76:79], s75 offen")
    A("s_waitcnt vmcnt(0)")
    A.label(L)

class VM:
    def __init__(self, A): self.A = A; self.n = 0; self.tag = {}
    def issue(self, ins, tag=None):
        self.A(ins); self.n += 1
        if tag is not None: self.tag[tag] = self.n
    def need(self, *tags):
        last = max(self.tag[t] for t in tags)
        return min(63, self.n - last)
    def wait(self, *tags, extra=""):
        c = self.need(*tags)
        if getattr(self, "done", 0) >= max(self.tag[t] for t in tags) and not extra: return
        self.done = max(getattr(self, "done", 0), self.n - c)
        self.A(f"s_waitcnt vmcnt({c}) {extra}".strip())
```

```python
from gen_common import *
import gen_tail as T
SPIN_MAX = 30000

def sync(A, wflag, pflag, nmem, between=None, poll=True, pre=None):
    L0, L1, L2, L3 = A.new("sy"), A.new("sy"), A.new("sy"), A.new("sy")
    if pre: pre()
    else: A("s_waitcnt vmcnt(0)")
    A("s_barrier")
    A("s_cmp_lg_u32 s16, 0"); A(f"s_cbranch_scc1 {L1}")
    A("v_mov_b32 v3, 1"); A("v_mov_b32 v4, 0"); A("s_mov_b64 exec, 1")
    A(f"buffer_store_dword v3, v4, s[32:35], s{wflag} offen sc1")
    A("s_mov_b64 exec, -1")
    if between:
        A(f"s_branch {L0}")
        A.label(L1)
        between()
        A(f"s_branch {L3}")
        A.label(L0)
    else: A.label(L1)
    if not poll: return
    A("s_cmp_lg_u32 s16, 0"); A(f"s_cbranch_scc1 {L3}")
    A(f"v_min_u32 v4, {nmem-1}, v1"); A("v_lshlrev_b32 v4, 2, v4"); A("s_mov_b32 s46, 0")
    A.label(L2)
    A(f"buffer_load_dword v3, v4, s[32:35], s{pflag} offen sc1")
    A("s_waitcnt vmcnt(0)")
    A("v_cmp_ne_u32 vcc, 1, v3"); A(f"s_cbranch_vccz {L3}")
    A("s_sleep 1"); A("s_add_u32 s46, s46, 1"); A(f"s_cmp_lt_u32 s46, {SPIN_MAX}"); A(f"s_cbranch_scc1 {L2}")
    A.label(L3)
    A("s_waitcnt vmcnt(0)"); A("s_barrier")

def dma3(A, sptr, wbytes, rowB, wstride, ngrp, colshift):
    RP = 1024 // rowB
    srd(A, 24, sptr, wbytes)
    if rowB == 256:
        A("v_lshrrev_b32 v6, 4, v1"); A("v_and_b32 v5, 15, v1"); A("v_lshlrev_b32 v7, 2, v6"); A("v_xor_b32 v5, v5, v7")
    else:
        A("v_lshrrev_b32 v6, 2, v1"); A("v_and_b32 v5, 3, v1")
    A("v_lshlrev_b32 v5, 4, v5"); A(f"s_mov_b32 s18, {wstride}"); A("v_mul_lo_u32 v7, v6, s18"); A("v_add_u32 v10, v7, v5")
    A("s_sub_u32 s18, s16, 1"); A(f"s_mul_i32 s19, s18, {RP*wstride}"); A("s_lshr_b32 s20, s2, 4"); A(f"s_lshl_b32 s20, s20, {colshift}"); A("s_add_u32 s19, s19, s20")
    A("s_lshl_b32 m0, s18, 10")
    n = -(-ngrp // 3)
    for i in range(n):
        A("s_nop 0")
        A("buffer_load_dwordx4 v10, s[24:27], s19 offen lds")
        if i < n - 1: A(f"s_add_u32 s19, s19, {3*RP*wstride}"); A("s_add_u32 m0, m0, 3072")

def red4(A, part):
    P, X, GA, SB, CB, S_, TMP, XF = 32, 96, 104, 120, 136, 152, 168, 176
    if part == 'pre':
        red4_pre(A, X, GA, SB, CB); return
    A("s_lshl_b32 s18, s60, 18"); A("s_add_u32 s18, s18, s15"); A(f"s_add_u32 s18, s18, {WS_PART}")
    for ks in range(8):
        A("s_add_u32 s19, s18, 4096")
        A(f"buffer_load_dwordx4 v[{P+8*ks}:{P+8*ks+3}], v14, s[32:35], s18 offen sc1")
        A(f"buffer_load_dwordx4 v[{P+8*ks+4}:{P+8*ks+7}], v14, s[32:35], s19 offen sc1")
        if ks < 7: A("s_add_u32 s18, s18, 32768")
    red4_main(A, P, X, GA, SB, CB, S_, TMP, XF)

def red4_pre(A, X, GA, SB, CB):
    A("v_lshrrev_b32 v4, 4, v1"); A("v_bfe_u32 v5, v1, 3, 1"); A("v_and_b32 v6, 7, v1")
    A("v_lshlrev_b32 v14, 10, v4"); A("v_lshlrev_b32 v7, 9, v5"); A("v_add_u32 v14, v14, v7"); A("v_lshlrev_b32 v7, 4, v6"); A("v_add_u32 v14, v14, v7")
    A("v_lshlrev_b32 v8, 4, v4"); A("v_lshlrev_b32 v7, 2, v5"); A("v_add_u32 v8, v8, v7")
    A("v_lshlrev_b32 v15, 1, v8"); A("v_lshlrev_b32 v7, 10, v6"); A("v_add_u32 v15, v15, v7"); A("v_lshlrev_b32 v9, 2, v8")
    A("s_lshl_b32 s15, s16, 13"); A("s_lshl_b32 s18, s61, 7"); A("s_add_u32 s15, s15, s18")
    A("s_lshl_b32 s19, s60, 15"); A("s_lshl_b32 s18, s61, 13"); A("s_add_u32 s19, s19, s18"); A("s_lshl_b32 s18, s16, 8"); A("s_add_u32 s19, s19, s18")
    for u in range(2):
        A(f"buffer_load_dwordx2 v[{X+4*u}:{X+4*u+1}], v15, s[36:39], s19 offen offset:{128*u}"); A(f"buffer_load_dwordx2 v[{X+4*u+2}:{X+4*u+3}], v15, s[36:39], s19 offen offset:{128*u+16}")
    A("s_lshl_b32 s18, s16, 9")
    for (reg, m) in ((GA, 2), (SB, 3), (CB, 4)):
        A(f"s_add_u32 s19, s18, {WS_MOD + m*2048}")
        for u in range(2):
            A(f"buffer_load_dwordx4 v[{reg+8*u}:{reg+8*u+3}], v9, s[32:35], s19 offen offset:{256*u}"); A(f"buffer_load_dwordx4 v[{reg+8*u+4}:{reg+8*u+7}], v9, s[32:35], s19 offen offset:{256*u+32}")
    A("v_lshlrev_b32 v12, 4, v6"); A("s_lshl_b32 s18, s16, 2"); A("v_add_u32 v13, s18, v12")
    A(f"v_add_u32 v12, {LDSR}, v12"); A(f"v_add_u32 v13, {LDSR}, v13")

def red4_main(A, P, X, GA, SB, CB, S_, TMP, XF):
    for ks in range(8):
        A(f"s_waitcnt vmcnt({14 - 2*ks})")
        if ks == 0: unpack_bf16(A, P, S_, 8)
        else:
            for u in range(2):
                unpack_bf16(A, P + 8*ks + 4*u, TMP, 4)
                for i in range(8): A(f"v_add_f32 v{S_+8*u+i}, v{S_+8*u+i}, v{TMP+i}")
    round_bf16_inplace(A, S_, 16, 10)
    A("s_waitcnt vmcnt(0)")
    unpack_bf16(A, X, XF, 8)
    for i in range(16): A(f"v_mul_f32 v{S_+i}, v{S_+i}, v{GA+i}")
    round_bf16_inplace(A, S_, 16, 10)
    for i in range(16): A(f"v_add_f32 v{XF+i}, v{XF+i}, v{S_+i}")
    for i in range(8): A(f"v_cvt_pk_bf16_f32 v{X+i}, v{XF+2*i}, v{XF+2*i+1}")
    A("s_lshl_b32 s19, s60, 15"); A("s_add_u32 s19, s19, s15"); A(f"s_add_u32 s18, s19, {WS_X1}")
    A(f"buffer_store_dwordx4 v[{X}:{X+3}], v14, s[32:35], s18 offen sc1"); A("s_add_u32 s18, s18, 4096")
    A(f"buffer_store_dwordx4 v[{X+4}:{X+7}], v14, s[32:35], s18 offen sc1")
    unpack_bf16(A, X, XF, 8)
    for i in range(16): A(f"v_add_f32 v{CB+i}, 1.0, v{CB+i}")
    def rowsum(t, off):
        A("s_nop 1"); A(f"v_add_f32_dpp v{t}, v{t}, v{t} row_ror:8 row_mask:0xf bank_mask:0xf")
        A(f"v_mov_b32 v11, v{t}"); A("s_nop 1"); A(f"v_permlane16_swap_b32 v{t}, v11"); A("s_nop 1"); A(f"v_add_f32 v{t}, v{t}, v11")
        A(f"v_mov_b32 v11, v{t}"); A("s_nop 1"); A(f"v_permlane32_swap_b32 v{t}, v11"); A("s_nop 1"); A(f"v_add_f32 v{t}, v{t}, v11")
        A(f"ds_write_b32 v13, v{t} offset:{off}")
        A("s_waitcnt lgkmcnt(0)"); A("s_barrier")
        A(f"ds_read_b128 v[56:59], v12 offset:{off}")
        A("s_waitcnt lgkmcnt(0)")
        A("v_add_f32 v56, v56, v57"); A("v_add_f32 v58, v58, v59"); A(f"v_add_f32 v{t}, v56, v58")
    t = 10
    A(f"v_add_f32 v{t}, v{XF}, v{XF+1}")
    for i in range(2, 16): A(f"v_add_f32 v{t}, v{t}, v{XF+i}")
    rowsum(t, 0)
    A(f"v_mul_f32 v{t}, {hx(-1.0/512)}, v{t}")
    for i in range(16): A(f"v_add_f32 v{XF+i}, v{XF+i}, v{t}")
    A(f"v_mul_f32 v{t}, v{XF}, v{XF}")
    for i in range(1, 16): A(f"v_fmac_f32 v{t}, v{XF+i}, v{XF+i}")
    rowsum(t, 128)
    A(f"v_mul_f32 v{t}, {hx(1.0/512)}, v{t}"); A(f"v_add_f32 v{t}, {hx(1e-5)}, v{t}"); A(f"v_rsq_f32 v{t}, v{t}"); A("s_nop 0")
    for i in range(16): A(f"v_mul_f32 v{XF+i}, v{XF+i}, v{t}")
    for i in range(16): A(f"v_fma_f32 v{XF+i}, v{XF+i}, v{CB+i}, v{SB+i}")
    for i in range(8): A(f"v_cvt_pk_bf16_f32 v{X+i}, v{XF+2*i}, v{XF+2*i+1}")
    A(f"s_add_u32 s18, s19, {WS_H2}")
    A(f"buffer_store_dwordx4 v[{X}:{X+3}], v14, s[32:35], s18 offen sc1"); A("s_add_u32 s18, s18, 4096")
    A(f"buffer_store_dwordx4 v[{X+4}:{X+7}], v14, s[32:35], s18 offen sc1")

LDSR = 131072

def gen_fused(name="tail_kernel"):
    A = Asm(); E = f"{name}_end"
    RT_ON[0] = True
    A("s_cmp_ge_u32 s2, 256"); A(f"s_cbranch_scc1 {E}")
    stamp(A, 0)
    A(f"s_load_dwordx2 s[4:5], s[0:1], {KA['wo']}"); A(f"s_load_dwordx2 s[10:11], s[0:1], {KA['ws']}")
    A(f"s_load_dwordx2 s[6:7], s[0:1], {KA['w1']}"); A(f"s_load_dwordx2 s[8:9], s[0:1], {KA['w2']}")
    A(f"s_load_dwordx2 s[12:13], s[0:1], {KA['out']}"); A(f"s_load_dwordx2 s[56:57], s[0:1], {KA['x']}")
    A("v_lshrrev_b32 v1, 6, v0"); A("s_nop 0"); A("v_readfirstlane_b32 s16, v1"); A("v_and_b32 v1, 63, v0"); A("v_lshlrev_b32 v2, 4, v1")
    A("s_waitcnt lgkmcnt(0)")
    srd(A, 24, 4, 4096*512*2); srd(A, 32, 10, WS_SIZE)
    T.gen_oproj2(F=A, part=None)
    stamp(A, 2)
    A("s_and_b32 s58, s2, 7"); A("s_lshr_b32 s59, s2, 6"); A("s_lshl_b32 s59, s59, 3"); A("s_add_u32 s58, s58, s59")
    A("s_bfe_u32 s59, s2, 0x30003")
    A("s_lshl_b32 s60, s59, 3"); A("s_lshr_b32 s61, s58, 2"); A("s_add_u32 s60, s60, s61"); A("s_and_b32 s61, s58, 3")
    A("s_lshl_b32 s63, s59, 7"); A(f"s_add_u32 s63, s63, {WS_FLAG}"); A("s_lshl_b32 s62, s58, 2"); A("s_add_u32 s62, s62, s63")
    def w1dma():
        L = A.new("w1")
        A("s_cmp_ge_u32 s2, 224"); A(f"s_cbranch_scc1 {L}")
        dma3(A, 6, 512*1792*2, 256, 3584, 128, 8)
        A.label(L)
    def redpre():
        srd(A, 36, 56, 2048*512*2)
        red4(A, 'pre')
        A("s_waitcnt vmcnt(16)")
    sync(A, 62, 63, 32, w1dma, True, redpre)
    stamp(A, 3)
    red4(A, 'main')
    stamp(A, 4)
    A("s_lshr_b32 s62, s60, 2"); A("s_lshl_b32 s62, s62, 7"); A("s_and_b32 s63, s60, 3"); A("s_lshl_b32 s63, s63, 4"); A("s_add_u32 s62, s62, s63")
    A("s_lshl_b32 s63, s61, 2"); A("s_add_u32 s62, s62, s63"); A(f"s_add_u32 s62, s62, {WS_FLAG + 1024}")
    A("s_and_b32 s63, s2, 15"); A("s_lshl_b32 s63, s63, 7"); A(f"s_add_u32 s63, s63, {WS_FLAG + 1024}")
    def w2dma():
        dma3(A, 8, 1792*512*2, 64, 1024, 112, 6)
    LN3, LP3 = A.new("n3"), A.new("p3")
    A("s_cmp_ge_u32 s2, 224"); A(f"s_cbranch_scc1 {LN3}")
    sync(A, 62, 63, 16)
    stamp(A, 5)
    T.gen_mlp12(F=A, part='main')
    stamp(A, 6)
    A("s_and_b32 s63, s2, 15"); A("s_lshl_b32 s63, s63, 7"); A(f"s_add_u32 s63, s63, {WS_FLAG + 3072}")
    A("s_lshr_b32 s62, s2, 4"); A("s_lshl_b32 s62, s62, 2"); A("s_add_u32 s62, s62, s63")
    A(f"s_branch {LP3}")
    A.label(LN3)
    sync(A, 62, 63, 16, None, poll=False)
    A("s_and_b32 s63, s2, 15"); A("s_lshl_b32 s63, s63, 7"); A(f"s_add_u32 s63, s63, {WS_FLAG + 3072}")
    A("s_add_u32 s62, s63, 124")
    A.label(LP3)
    sync(A, 62, 63, 14, w2dma)
    stamp(A, 7)
    srd(A, 36, 12, 2048*512*2)
    T.gen_mlp2(F=A, part='main')
    if PROF:
        A("s_waitcnt vmcnt(0)"); stamp(A, 1)
    if os.environ.get("RT") == "1": stamp_dump(A, 8, 16, 0)
    else: stamp_out(A, 8, int(os.environ.get("PWG", "37")), 16, 0, 0)
    RT_ON[0] = False
    A.label(E); A("s_endpgm")
    return kernel_head(name) + A.text() + kernel_desc(name, 512, accum=256), f"; @launch kernel={name} grid=(256,1,1) block=(256,1,1) lds={LDSR + 1024}\n"
```

```python
from gen_common import *
STC = os.environ.get("STC_TL", "sc1")

def gemm(name, nwg, S, MR, NB, rowB, dmap, wkey, wstride, wbytes, C, R, ids, act, epi, lds, w_is_A=True, WD=2, F=None, part=None, pre=None):
    fused = F is not None
    A = F if fused else Asm(); E = f"{name}_end"
    LF = " sc1" if fused else ""
    if not fused:
        A(f"s_cmp_ge_u32 s2, {nwg}"); A(f"s_cbranch_scc1 {E}")
        stamp(A, 0)
        A(f"s_load_dwordx2 s[4:5], s[0:1], {KA[wkey]}")
        A(f"s_load_dwordx2 s[10:11], s[0:1], {KA['ws']}")
        A(f"s_load_dwordx2 s[12:13], s[0:1], {KA['out']}")
        A("v_lshrrev_b32 v1, 6, v0"); A("s_nop 0"); A("v_readfirstlane_b32 s16, v1"); A("v_and_b32 v1, 63, v0"); A("v_lshlrev_b32 v2, 4, v1")
    ids(A)
    if not fused:
        A("s_waitcnt lgkmcnt(0)")
        srd(A, 24, 4, wbytes); srd(A, 32, 10, WS_SIZE); srd(A, 36, 12, 2048*512*2)
    RP, LP = 1024 // rowB, rowB // 16
    rows_chunk = 16 * S // C; nper = rows_chunk * rowB // 1024 // 4; spc = S // C
    lg = {4: 2, 8: 3, 16: 4}[LP]
    A(f"v_lshrrev_b32 v6, {lg}, v1"); A(f"v_and_b32 v5, {LP-1}, v1")
    if rowB == 256: A("v_lshlrev_b32 v7, 2, v6"); A("v_xor_b32 v5, v5, v7")
    if rowB == 128: A("v_lshlrev_b32 v7, 1, v6"); A("v_and_b32 v7, 4, v7"); A("v_xor_b32 v5, v5, v7")
    A("v_lshlrev_b32 v5, 4, v5")
    A(f"s_mul_i32 s18, s16, {nper*RP}"); A("v_add_u32 v7, s18, v6"); A(f"s_mov_b32 s18, {wstride}"); A("v_mul_lo_u32 v7, v7, s18")
    A("v_add_u32 v10, v7, v5")
    nv = min(4, nper)
    for j in range(1, nv): A(f"v_add_u32 v{10+j}, {j*(RP*wstride-1024)}, v10")
    vm = VM(A)
    def dma(c, j):
        if part == 'main': return
        if j % 4 == 0:
            A(f"s_mul_i32 s18, s16, {nper*1024}"); A(f"s_add_u32 s19, s20, {(c*rows_chunk + j*RP)*wstride}")
            A(f"s_add_u32 m0, s18, {c*rows_chunk*rowB + j*1024}"); A("s_nop 0")
        vm.issue(f"buffer_load_dwordx4 v{10+j%4}, s[24:27], s19 offen offset:{1024*(j%4)} lds", ('D', c))
    if part == 'wdma':
        for c in range(C):
            for j in range(nper): dma(c, j)
        return
    AB = 256
    nact = S * MR
    if pre: pre(A)
    def aload(i):
        s_, mr = i // MR, i % MR; slot = i % R
        off = mr * act + s_ * 1024
        A(f"s_add_u32 s47, s21, {off & ~4095}")
        vm.issue(f"buffer_load_dwordx4 a[{4*slot}:{4*slot+3}], v2, s[32:35], s47 offen offset:{off & 4095}{LF}", ('A', i))
    for j in range(nper): dma(0, j)
    npre = min(R, nact)
    for i in range(min(8, npre)): aload(i)
    for j in range(nper): dma(1, j)
    win = 65536 // (16 * rowB); nwin = (S + win - 1) // win
    A("v_lshrrev_b32 v4, 4, v1"); A("v_bfe_u32 v5, v1, 2, 2"); A("v_and_b32 v6, 3, v1")
    A(f"v_lshrrev_b32 v7, 1, v4"); A(f"v_lshlrev_b32 v7, {2 if dmap else 3}, v7"); A("v_add_u32 v7, v7, v5"); A(f"v_mul_u32_u24 v7, {rowB}, v7")
    A("v_and_b32 v8, 1, v4"); A("v_lshlrev_b32 v8, 1, v8"); A("v_lshrrev_b32 v9, 1, v6"); A("v_add_u32 v8, v8, v9"); A("v_lshlrev_b32 v8, 4, v8")
    A("v_and_b32 v9, 1, v6"); A("v_lshlrev_b32 v9, 3, v9"); A("v_add_u32 v8, v8, v9"); A("v_add_u32 v7, v7, v8")
    if rowB == 128: A("v_lshrrev_b32 v5, 1, v5")
    TA = 16
    for nb in range(NB):
        if rowB == 64: A(f"v_mov_b32 v{TA+nb}, v7")
        else: A(f"v_xor_b32 v8, {nb}, v5"); A("v_lshlrev_b32 v8, 6, v8"); A(f"v_add_u32 v{TA+nb}, v7, v8")
        for wn in range(1, nwin): A(f"v_add_u32 v{TA+wn*NB+nb}, {wn*65536}, v{TA+nb}")
    sec = (8 if dmap else 4) * rowB
    WB = [32 + 4*NB*i for i in range(WD)]; ACC = 128
    lg_n = [0]; lg_tag = {}
    def wreads(s_, nb):
        ar = TA + (s_ // win) * NB + nb; off = (s_ % win) * 16 * rowB; r = WB[s_ % WD] + 4*nb
        A(f"ds_read_b64_tr_b16 v[{r}:{r+1}], v{ar} offset:{off}"); A(f"ds_read_b64_tr_b16 v[{r+2}:{r+3}], v{ar} offset:{off+sec}")
        lg_n[0] += 2; lg_tag[(s_, nb)] = lg_n[0]
    dq = [(c, j) for c in range(2, C) for j in range(nper)]
    if part == 'main': dq = []
    nxt_a = min(8, npre)
    nrd = 2 * NB
    for s_ in range(S):
        if s_ == 0:
            if part != 'main': vm.wait(('D', 0)); A("s_barrier"); stamp(A, 1)
            for q in range(WD - 1):
                for nb in range(NB): wreads(q, nb)
        if part != 'main' and (s_ + WD - 1) % spc == 0 and s_ + WD - 1 < S:
            vm.wait(('D', (s_ + WD - 1) // spc)); A("s_barrier")
        vm.wait(*[('A', s_*MR + mr) for mr in range(MR)])
        k = 0
        for nb in range(NB):
            for mr in range(MR):
                if mr == 0:
                    A(f"s_waitcnt lgkmcnt({min(15, lg_n[0] - lg_tag[(s_, nb)])})")
                slot = (s_*MR + mr) % R
                w = f"v[{WB[s_%WD]+4*nb}:{WB[s_%WD]+4*nb+3}]"; x_ = f"a[{4*slot}:{4*slot+3}]"
                d0 = ACC + 16*(mr*NB + nb); d = f"v[{d0}:{d0+15}]"
                a_, b_ = (w, x_) if w_is_A else (x_, w)
                A(f"v_mfma_f32_32x32x16_bf16 {d}, {a_}, {b_}, {'0' if s_ == 0 else d}")
                if mr == MR - 1 and s_ + WD - 1 < S: wreads(s_ + WD - 1, nb)
                if k == 0 or (MR*NB >= 4 and k == 2):
                    lim = min(nact, max(npre, (s_ - 1) * MR + MR - 1 + R + 1 - 0) if s_ >= 1 else npre)
                    lim = min(nact, (s_ * MR) + R) if s_ >= 1 else min(nact, npre)
                    for _ in range(2 if nxt_a < npre else MR):
                        if nxt_a < lim: aload(nxt_a); nxt_a += 1
                if k == MR*NB - 1 and dq:
                    dma(*dq.pop(0))
                    if nper > spc and dq: dma(*dq.pop(0))
                k += 1
    assert nxt_a == nact and not dq, (nxt_a, nact, dq)
    if not fused: stamp(A, 2)
    A("s_nop 7"); A("s_nop 7")
    epi(A, ACC, vm)
    if fused: return
    if PROF: A("s_waitcnt vmcnt(0)")
    stamp(A, 3)
    stamp_out(A, 4, 37, 16, 0, 0)
    A.label(E); A("s_endpgm")
    return kernel_head(name) + A.text() + kernel_desc(name, 512, accum=256), f"; @launch kernel={name} grid=({nwg},1,1) block=(256,1,1) lds={lds}\n"

def gemm2(name, nwg, S, MR, phases, wkey, wstride, wbytes, C, ids, act, epi_addr, epi_block, lds, D=5, prof_wg=37, F=None, part=None):
    NB = 4; rowB = 256
    fused = F is not None
    A = F if fused else Asm(); E = f"{name}_end"
    LF = " sc1" if (fused and part == 'main') else ""
    if not fused:
        A(f"s_cmp_ge_u32 s2, {nwg}"); A(f"s_cbranch_scc1 {E}")
        stamp(A, 0)
        A(f"s_load_dwordx2 s[4:5], s[0:1], {KA[wkey]}")
        A(f"s_load_dwordx2 s[10:11], s[0:1], {KA['ws']}")
        A("v_lshrrev_b32 v1, 6, v0"); A("s_nop 0"); A("v_readfirstlane_b32 s16, v1"); A("v_and_b32 v1, 63, v0"); A("v_lshlrev_b32 v2, 4, v1")
    ids(A)
    rows_chunk = 16 * S // C; nper = rows_chunk * rowB // 1024 // 4; spc = S // C
    A("v_lshrrev_b32 v6, 4, v1"); A("v_and_b32 v5, 15, v1"); A("v_lshlrev_b32 v7, 2, v6"); A("v_xor_b32 v5, v5, v7"); A("v_lshlrev_b32 v5, 4, v5")
    A(f"s_mul_i32 s18, s16, {nper*4}"); A("v_add_u32 v7, s18, v6"); A(f"s_mov_b32 s18, {wstride}"); A("v_mul_lo_u32 v7, v7, s18")
    A("v_add_u32 v10, v7, v5")
    for j in range(1, min(4, nper)): A(f"v_add_u32 v{10+j}, {j*(4*wstride-1024)}, v10")
    if not fused:
        A("s_waitcnt lgkmcnt(0)")
        srd(A, 24, 4, wbytes); srd(A, 32, 10, WS_SIZE)
    vm = VM(A)
    def dma(c, j):
        if part == 'main': return
        if j % 4 == 0:
            A(f"s_mul_i32 s18, s16, {nper*1024}"); A(f"s_add_u32 s19, s20, {(c*rows_chunk + j*4)*wstride}")
            A(f"s_add_u32 m0, s18, {c*rows_chunk*rowB + j*1024}"); A("s_nop 0")
        vm.issue(f"buffer_load_dwordx4 v{10+j%4}, s[24:27], s19 offen offset:{1024*(j%4)} lds", ('D', c))
    if part == 'wdma':
        for c in range(C):
            for j in range(nper): dma(c, j)
        return
    nact = S * MR
    def aload(i):
        s_, mr = i // MR, i % MR
        off = mr * act + s_ * 1024
        A(f"s_add_u32 s47, s21, {off & ~4095}")
        vm.issue(f"buffer_load_dwordx4 a[{4*i}:{4*i+3}], v2, s[32:35], s47 offen offset:{off & 4095}{LF}", ('A', i))
    for j in range(nper): dma(0, j)
    for i in range(spc * MR): aload(i)
    for j in range(nper): dma(1, j)
    rest = []
    for c in range(1, C):
        if c >= 2 and part != 'main': rest += [('d', c, j) for j in range(nper)]
        rest += [('a', i) for i in range(c*spc*MR, (c+1)*spc*MR)]
    A("v_lshrrev_b32 v4, 4, v1"); A("v_bfe_u32 v5, v1, 2, 2"); A("v_and_b32 v6, 3, v1")
    A("v_lshrrev_b32 v7, 1, v4"); A("v_lshlrev_b32 v7, 2, v7"); A("v_add_u32 v7, v7, v5"); A(f"v_mul_u32_u24 v7, {rowB}, v7")
    A("v_and_b32 v8, 1, v4"); A("v_lshlrev_b32 v8, 1, v8"); A("v_lshrrev_b32 v9, 1, v6"); A("v_add_u32 v8, v8, v9"); A("v_lshlrev_b32 v8, 4, v8")
    A("v_and_b32 v9, 1, v6"); A("v_lshlrev_b32 v9, 3, v9"); A("v_add_u32 v8, v8, v9"); A("v_add_u32 v7, v7, v8")
    nwin = (S + 15) // 16; TA = 16
    for nb in range(NB):
        A(f"v_xor_b32 v8, {nb}, v5"); A("v_lshlrev_b32 v8, 6, v8"); A(f"v_add_u32 v{TA+nb}, v7, v8")
        for wn in range(1, nwin): A(f"v_add_u32 v{TA+wn*NB+nb}, {wn*65536}, v{TA+nb}")
    epi_addr(A)
    ACC = 128; RING = 8; WB = 32
    uses = [(s_, nb) for ph in phases for s_ in range(S) for nb in ph]
    lg_n = [0]; lg_tag = {}; landed = set()
    def wread(i):
        s_, nb = uses[i]
        c = s_ // spc
        if c not in landed and part != 'main':
            vm.wait(('D', c)); A("s_barrier"); landed.add(c)
            if c == 0: stamp(A, 1)
        ar = TA + (s_ // 16) * NB + nb; off = (s_ % 16) * 16 * rowB; r = WB + 4*(i % RING)
        A(f"ds_read_b64_tr_b16 v[{r}:{r+1}], v{ar} offset:{off}"); A(f"ds_read_b64_tr_b16 v[{r+2}:{r+3}], v{ar} offset:{off+8*rowB}")
        lg_n[0] += 2; lg_tag[i] = lg_n[0]
    for i in range(D): wread(i)
    epq = []
    done_nb = []
    phase_end = {}
    k = 0
    for ph in phases:
        k += S * len(ph); phase_end[k - 1] = ph
    hold = 0
    nmf = len(uses) * MR; mi = 0
    for i, (s_, nb) in enumerate(uses):
        first_phase = i < S * len(phases[0])
        if first_phase: vm.wait(*[('A', s_*MR + mr) for mr in range(MR)])
        A(f"s_waitcnt lgkmcnt({min(15, lg_n[0] - lg_tag[i])})")
        for mr in range(MR):
            w = f"v[{WB+4*(i%RING)}:{WB+4*(i%RING)+3}]"; x_ = f"a[{4*(s_*MR+mr)}:{4*(s_*MR+mr)+3}]"
            d0 = ACC + 16*(mr*NB + nb); d = f"v[{d0}:{d0+15}]"
            A(f"v_mfma_f32_32x32x16_bf16 {d}, {w}, {x_}, {'0' if s_ == 0 else d}")
            mi += 1
            if mr == MR - 1 and i + D < len(uses): wread(i + D)
            if rest:
                for _ in range(2 if MR == 2 else 1):
                    if rest:
                        op = rest.pop(0)
                        if op[0] == 'd': dma(op[1], op[2])
                        else: aload(op[1])
            elif hold > 0: hold -= 1
            elif epq:
                left = min(j for j in phase_end if j >= i) - i + 1
                per = max(1, min(5, -(-len(epq) // max(1, left * MR - 3))))
                n = 0
                while epq and n < per:
                    it = epq.pop(0)
                    if it[0] == 's':
                        vm.issue(it[1]); n += 2
                    else: A(it[1]); n += 1
        if i in phase_end:
            assert not rest
            for nb2 in phase_end[i]:
                for mr in range(MR): epq += epi_block(ACC + 16*(mr*NB + nb2), mr, nb2)
            hold = 3
    if not fused: stamp(A, 2)
    A("s_nop 7"); A("s_nop 7")
    for it in epq:
        if it[0] == 's': vm.issue(it[1])
        else: A(it[1])
    if fused: return
    if PROF: A("s_waitcnt vmcnt(0)")
    stamp(A, 3)
    stamp_out(A, 4, prof_wg, 16, 0, 0)
    A.label(E); A("s_endpgm")
    return kernel_head(name) + A.text() + kernel_desc(name, 512, accum=256), f"; @launch kernel={name} grid=({nwg},1,1) block=(256,1,1) lds={lds}\n"

def gen_oproj2(F=None, part=None):
    def ids(A):
        A("s_and_b32 s15, s2, 7"); A("s_bfe_u32 s14, s2, 0x30003"); A("s_lshr_b32 s17, s2, 6")
        A("s_lshl_b32 s20, s15, 19"); A("s_lshl_b32 s18, s17, 8"); A("s_add_u32 s20, s20, s18")
        A("s_lshl_b32 s21, s14, 3"); A("s_lshl_b32 s18, s16, 1"); A("s_add_u32 s21, s21, s18")
        A("s_mov_b32 s22, s21")
        A("s_lshl_b32 s21, s21, 18"); A("s_lshl_b32 s18, s15, 15"); A("s_add_u32 s21, s21, s18"); A(f"s_add_u32 s21, s21, {WS_CTX}")
    def epi_addr(A):
        A("s_lshl_b32 s40, s22, 18"); A("s_lshl_b32 s41, s15, 15"); A("s_add_u32 s40, s40, s41"); A("s_lshl_b32 s41, s17, 13"); A("s_add_u32 s40, s40, s41")
        A(f"s_add_u32 s40, s40, {WS_PART}"); A("s_add_u32 s41, s40, 4096")
        A(f"s_add_u32 s42, s40, {1 << 18}"); A("s_add_u32 s43, s42, 4096")
    def epi_block(a0, mr, nb):
        it = []
        for t in range(2):
            for i in range(4*t, 4*t+4): it.append(('v', f"v_cvt_pk_bf16_f32 v{a0+i}, v{a0+2*i}, v{a0+2*i+1}"))
        for t in range(2):
            f = 2*nb + t
            it.append(('s', f"buffer_store_dwordx4 v[{a0+4*t}:{a0+4*t+3}], v2, s[32:35], s{40 + 2*mr + f//4} offen offset:{(f%4)*1024} {STC}"))
        return it
    return gemm2("oproj_kernel", 256, 32, 2, [(0, 1), (2,), (3,)], 'wo', 1024, 4096*512*2, 4, ids, 262144, epi_addr, epi_block, 131072, F=F, part=part)

def gen_mlp12(F=None, part=None):
    def ids(A):
        A("s_and_b32 s14, s2, 15"); A("s_lshr_b32 s17, s2, 4")
        A("s_lshl_b32 s20, s17, 8")
        A("s_lshl_b32 s22, s14, 2"); A("s_add_u32 s22, s22, s16")
        A("s_lshl_b32 s21, s22, 15"); A(f"s_add_u32 s21, s21, {WS_H2}")
    def epi_addr(A):
        A(f"s_mul_i32 s40, s22, {112*1024}"); A("s_lshl_b32 s41, s17, 13"); A("s_add_u32 s40, s40, s41"); A(f"s_add_u32 s40, s40, {WS_HID}"); A("s_add_u32 s41, s40, 4096")
    def epi_block(a0, mr, nb):
        it = []; T = 64 + 16 * (nb % 2)
        for i in range(16): it.append(('v', f"v_mul_f32 v{T+i}, {hx(-LOG2E)}, v{a0+i}"))
        for i in range(16): it.append(('v', f"v_exp_f32 v{T+i}, v{T+i}"))
        for i in range(16): it.append(('v', f"v_add_f32 v{T+i}, 1.0, v{T+i}"))
        for i in range(16): it.append(('v', f"v_rcp_f32 v{T+i}, v{T+i}"))
        for i in range(16): it.append(('v', f"v_mul_f32 v{a0+i}, v{a0+i}, v{T+i}"))
        for i in range(8): it.append(('v', f"v_cvt_pk_bf16_f32 v{a0+i}, v{a0+2*i}, v{a0+2*i+1}"))
        for t in range(2):
            f = 2*nb + t
            it.append(('s', f"buffer_store_dwordx4 v[{a0+4*t}:{a0+4*t+3}], v2, s[32:35], s{40 + f//4} offen offset:{(f%4)*1024} {STC}"))
        return it
    return gemm2("mlp1_kernel", 224, 32, 1, [(0, 1), (2,), (3,)], 'w1', 3584, 512*1792*2, 4, ids, 0, epi_addr, epi_block, 131072, D=6, F=F, part=part)

def gen_oproj():
    def ids(A):
        A("s_and_b32 s15, s2, 7"); A("s_bfe_u32 s14, s2, 0x30003"); A("s_lshr_b32 s17, s2, 6")
        A("s_lshl_b32 s20, s15, 19"); A("s_lshl_b32 s18, s17, 8"); A("s_add_u32 s20, s20, s18")
        A("s_lshl_b32 s21, s14, 3"); A("s_lshl_b32 s18, s16, 1"); A("s_add_u32 s21, s21, s18")
        A("s_mov_b32 s22, s21")
        A("s_lshl_b32 s21, s21, 18"); A("s_lshl_b32 s18, s15, 15"); A("s_add_u32 s21, s21, s18"); A(f"s_add_u32 s21, s21, {WS_CTX}")
    def epi(A, ACC, vm):
        A("s_lshl_b32 s18, s22, 18"); A("s_lshl_b32 s19, s15, 15"); A("s_add_u32 s18, s18, s19"); A("s_lshl_b32 s19, s17, 13"); A("s_add_u32 s18, s18, s19")
        A(f"s_add_u32 s18, s18, {WS_PART}"); A("s_add_u32 s19, s18, 4096")
        A(f"s_add_u32 s40, s18, {1 << 18}"); A("s_add_u32 s41, s40, 4096")
        for mr in range(2):
            for nb in range(4):
                a0 = ACC + 16*(mr*4 + nb)
                for i in range(8): A(f"v_cvt_pk_bf16_f32 v{a0+i}, v{a0+2*i}, v{a0+2*i+1}")
                for t in range(2):
                    f = 2*nb + t; sb = (18 if mr == 0 else 40) + f // 4
                    A(f"buffer_store_dwordx4 v[{a0+4*t}:{a0+4*t+3}], v2, s[32:35], s{sb} offen offset:{(f%4)*1024} {STC}")
    return gemm("oproj_kernel", 256, 32, 2, 4, 256, True, 'wo', 1024, 4096*512*2, 4, 32, ids, 262144, epi, 131072)

def gen_red():
    name = "red_kernel"; A = Asm(); E = f"{name}_end"
    A(f"s_cmp_ge_u32 s2, 256"); A(f"s_cbranch_scc1 {E}")
    stamp(A, 0)
    A(f"s_load_dwordx2 s[4:5], s[0:1], {KA['x']}"); A(f"s_load_dwordx2 s[10:11], s[0:1], {KA['ws']}")
    A("v_lshrrev_b32 v1, 6, v0"); A("s_nop 0"); A("v_readfirstlane_b32 s16, v1"); A("v_and_b32 v1, 63, v0")
    A("s_lshr_b32 s17, s2, 2"); A("s_and_b32 s14, s2, 3")
    A("v_lshrrev_b32 v4, 4, v1"); A("v_bfe_u32 v5, v1, 3, 1"); A("v_and_b32 v6, 7, v1")
    A("v_lshlrev_b32 v2, 10, v4"); A("v_lshlrev_b32 v7, 9, v5"); A("v_add_u32 v2, v2, v7"); A("v_lshlrev_b32 v7, 4, v6"); A("v_add_u32 v2, v2, v7")
    A("v_lshlrev_b32 v8, 4, v4"); A("v_lshlrev_b32 v7, 2, v5"); A("v_add_u32 v8, v8, v7")
    A("v_lshlrev_b32 v3, 1, v8"); A("v_lshlrev_b32 v7, 10, v6"); A("v_add_u32 v3, v3, v7"); A("v_lshlrev_b32 v9, 2, v8")
    A("s_lshl_b32 s15, s16, 12"); A("s_lshl_b32 s18, s14, 7"); A("s_add_u32 s15, s15, s18")
    A("s_waitcnt lgkmcnt(0)")
    srd(A, 20, 4, 2048*512*2); srd(A, 32, 10, WS_SIZE)
    A("s_lshl_b32 s18, s17, 18"); A("s_add_u32 s18, s18, s15"); A(f"s_add_u32 s18, s18, {WS_PART}")
    P = 32
    for ks in range(8):
        A(f"buffer_load_dwordx4 v[{P+4*ks}:{P+4*ks+3}], v2, s[32:35], s18 offen")
        if ks < 7: A("s_add_u32 s18, s18, 32768")
    A("s_lshl_b32 s19, s17, 15"); A("s_lshl_b32 s18, s14, 13"); A("s_add_u32 s19, s19, s18"); A("s_lshl_b32 s18, s16, 7"); A("s_add_u32 s19, s19, s18")
    A("buffer_load_dwordx2 v[24:25], v3, s[20:23], s19 offen"); A("buffer_load_dwordx2 v[26:27], v3, s[20:23], s19 offen offset:16")
    A("s_lshl_b32 s18, s16, 8")
    for (reg, m) in ((64, 2), (72, 3), (80, 4)):
        A(f"s_add_u32 s19, s18, {WS_MOD + m*2048}")
        A(f"buffer_load_dwordx4 v[{reg}:{reg+3}], v9, s[32:35], s19 offen"); A(f"buffer_load_dwordx4 v[{reg+4}:{reg+7}], v9, s[32:35], s19 offen offset:32")
    A("v_lshlrev_b32 v12, 5, v6"); A("s_lshl_b32 s18, s16, 2"); A("v_add_u32 v13, s18, v12")
    S_ = 96
    for ks in range(8):
        A(f"s_waitcnt vmcnt({7 - ks + 8})")
        if ks == 0: unpack_bf16(A, P, S_, 4)
        else:
            unpack_bf16(A, P + 4*ks, S_ + 8, 4)
            for i in range(8): A(f"v_add_f32 v{S_+i}, v{S_+i}, v{S_+8+i}")
    round_bf16_inplace(A, S_, 8, 10)
    A("s_waitcnt vmcnt(0)")
    unpack_bf16(A, 24, 40, 4)
    for i in range(8): A(f"v_mul_f32 v{S_+i}, v{S_+i}, v{64+i}")
    round_bf16_inplace(A, S_, 8, 10)
    for i in range(8): A(f"v_add_f32 v{40+i}, v{40+i}, v{S_+i}")
    for i in range(4): A(f"v_cvt_pk_bf16_f32 v{24+i}, v{40+2*i}, v{41+2*i}")
    A("s_lshl_b32 s19, s17, 15"); A("s_add_u32 s19, s19, s15"); A(f"s_add_u32 s18, s19, {WS_X1}")
    A("buffer_store_dwordx4 v[24:27], v2, s[32:35], s18 offen")
    unpack_bf16(A, 24, 40, 4)
    for i in range(8): A(f"v_add_f32 v{80+i}, 1.0, v{80+i}")
    def rowsum(t, off):
        A("s_nop 1"); A(f"v_add_f32_dpp v{t}, v{t}, v{t} row_ror:8 row_mask:0xf bank_mask:0xf")
        A(f"v_mov_b32 v11, v{t}"); A("s_nop 1"); A(f"v_permlane16_swap_b32 v{t}, v11"); A("s_nop 1"); A(f"v_add_f32 v{t}, v{t}, v11")
        A(f"v_mov_b32 v11, v{t}"); A("s_nop 1"); A(f"v_permlane32_swap_b32 v{t}, v11"); A("s_nop 1"); A(f"v_add_f32 v{t}, v{t}, v11")
        A(f"ds_write_b32 v13, v{t} offset:{off}")
        A("s_waitcnt lgkmcnt(0)"); A("s_barrier")
        A(f"ds_read_b128 v[56:59], v12 offset:{off}"); A(f"ds_read_b128 v[60:63], v12 offset:{off+16}")
        A("s_waitcnt lgkmcnt(0)")
        for i in range(4): A(f"v_add_f32 v{56+i}, v{56+i}, v{60+i}")
        A("v_add_f32 v56, v56, v57"); A("v_add_f32 v58, v58, v59"); A(f"v_add_f32 v{t}, v56, v58")
    t = 10
    A(f"v_add_f32 v{t}, v40, v41")
    for i in range(2, 8): A(f"v_add_f32 v{t}, v{t}, v{40+i}")
    rowsum(t, 0)
    A(f"v_mul_f32 v{t}, {hx(-1.0/512)}, v{t}")
    for i in range(8): A(f"v_add_f32 v{40+i}, v{40+i}, v{t}")
    A(f"v_mul_f32 v{t}, v40, v40")
    for i in range(1, 8): A(f"v_fmac_f32 v{t}, v{40+i}, v{40+i}")
    rowsum(t, 256)
    A(f"v_mul_f32 v{t}, {hx(1.0/512)}, v{t}"); A(f"v_add_f32 v{t}, {hx(1e-5)}, v{t}"); A(f"v_rsq_f32 v{t}, v{t}"); A("s_nop 0")
    for i in range(8): A(f"v_mul_f32 v{40+i}, v{40+i}, v{t}")
    for i in range(8): A(f"v_fma_f32 v{40+i}, v{40+i}, v{80+i}, v{72+i}")
    for i in range(4): A(f"v_cvt_pk_bf16_f32 v{28+i}, v{40+2*i}, v{41+2*i}")
    A(f"s_add_u32 s18, s19, {WS_H2}")
    A("buffer_store_dwordx4 v[28:31], v2, s[32:35], s18 offen")
    if PROF: A("s_waitcnt vmcnt(0)")
    stamp(A, 1)
    stamp_out(A, 2, 37, 16, 0, 0)
    A.label(E); A("s_endpgm")
    return kernel_head(name) + A.text() + kernel_desc(name, 128), f"; @launch kernel={name} grid=(256,1,1) block=(512,1,1) lds=1024\n"

def gen_mlp1():
    def ids(A):
        A("s_and_b32 s14, s2, 15"); A("s_lshr_b32 s17, s2, 4")
        A("s_lshl_b32 s20, s17, 8")
        A("s_lshl_b32 s22, s14, 2"); A("s_add_u32 s22, s22, s16")
        A("s_lshl_b32 s21, s22, 15"); A(f"s_add_u32 s21, s21, {WS_H2}")
    def epi(A, ACC, vm):
        A(f"s_mul_i32 s18, s22, {112*1024}"); A("s_lshl_b32 s19, s17, 13"); A("s_add_u32 s18, s18, s19"); A(f"s_add_u32 s18, s18, {WS_HID}"); A("s_add_u32 s19, s18, 4096")
        for nb in range(4):
            a0 = ACC + 16*nb
            for i in range(16): A(f"v_mul_f32 v{32+i}, {hx(-LOG2E)}, v{a0+i}")
            for i in range(16): A(f"v_exp_f32 v{32+i}, v{32+i}")
            for i in range(16): A(f"v_add_f32 v{32+i}, 1.0, v{32+i}")
            for i in range(16): A(f"v_rcp_f32 v{32+i}, v{32+i}")
            for i in range(16): A(f"v_mul_f32 v{a0+i}, v{a0+i}, v{32+i}")
            for i in range(8): A(f"v_cvt_pk_bf16_f32 v{a0+i}, v{a0+2*i}, v{a0+2*i+1}")
            for t in range(2):
                f = 2*nb + t
                A(f"buffer_store_dwordx4 v[{a0+4*t}:{a0+4*t+3}], v2, s[32:35], s{18 + f//4} offen offset:{(f%4)*1024} {STC}")
    return gemm("mlp1_kernel", 224, 32, 1, 4, 256, True, 'w1', 3584, 512*1792*2, 4, 32, ids, 0, epi, 131072)

def gen_mlp2(F=None, part=None):
    def ids(A):
        A("s_and_b32 s14, s2, 15"); A("s_lshr_b32 s17, s2, 4")
        A("s_lshl_b32 s20, s17, 6")
        A("s_lshl_b32 s22, s14, 2"); A("s_add_u32 s22, s22, s16")
        A(f"s_mul_i32 s21, s22, {112*1024}"); A(f"s_add_u32 s21, s21, {WS_HID}")
    def pre(A):
        A("v_lshrrev_b32 v5, 5, v1")
        A("s_lshl_b32 s19, s22, 15"); A("s_lshl_b32 s23, s17, 11"); A("s_add_u32 s19, s19, s23"); A(f"s_add_u32 s19, s19, {WS_X1}")
        for t in range(2): A(f"buffer_load_dwordx4 v[{96+4*t}:{99+4*t}], v2, s[32:35], s19 offen offset:{1024*t}{' sc1' if F is not None else ''}")
        A("v_lshlrev_b32 v7, 4, v5"); A("s_lshl_b32 s19, s17, 7"); A(f"s_add_u32 s19, s19, {WS_MOD + 5*2048}")
        for a_ in range(4): A(f"buffer_load_dwordx4 v[{104+4*a_}:{107+4*a_}], v7, s[32:35], s19 offen offset:{32*a_}")
    def epi(A, ACC, vm):
        A("v_and_b32 v4, 31, v1"); A("v_lshrrev_b32 v5, 5, v1")
        A("v_lshlrev_b32 v6, 10, v4"); A("v_lshlrev_b32 v7, 3, v5"); A("v_add_u32 v6, v6, v7")
        A("s_lshl_b32 s18, s22, 15"); A("s_lshl_b32 s19, s17, 6"); A("s_add_u32 s18, s18, s19")
        round_bf16_inplace(A, ACC, 16, 10)
        for i in range(16): A(f"v_mul_f32 v{ACC+i}, v{ACC+i}, v{104+i}")
        round_bf16_inplace(A, ACC, 16, 10)
        unpack_bf16(A, 96, 64, 8)
        for i in range(16): A(f"v_add_f32 v{ACC+i}, v{ACC+i}, v{64+i}")
        for i in range(8): A(f"v_cvt_pk_bf16_f32 v{32+i}, v{ACC+2*i}, v{ACC+2*i+1}")
        for a_ in range(4): A(f"buffer_store_dwordx2 v[{32+2*a_}:{33+2*a_}], v6, s[36:39], s18 offen offset:{16*a_}")
    return gemm("mlp2_kernel", 256, 112, 1, 1, 64, True, 'w2', 1024, 1792*512*2, 7, 32, ids, 0, epi, 114688, WD=6, F=F, part=part, pre=pre)

def gen_tail():
    if os.environ.get("FUSE", "1") == "1":
        import gen_fused
        return [gen_fused.gen_fused()]
    return [gen_oproj2(), gen_red(), gen_mlp12(), gen_mlp2()]
```

```python
import os
from asmlib import *
KA = dict(x=0, ckv=8, wq=16, wuk=24, wuv=32, wo=40, bx=48, w1=56, w2=64, c=72, wmod=80, out=88, dbg=96, ws=104)
WS_MOD  = 0x0
WS_H1   = 0x100000
WS_CF   = 0x400000
WS_KV   = 0x1000000
WS_CTX  = 0x3000000
WS_PART = 0x4000000
WS_X1   = 0x5000000
WS_H2   = 0x5200000
WS_HID  = 0x5400000
WS_SIZE = 0x10000000
WSB = int(os.environ.get('WSB', '0'), 0)
WS_MOD += WSB; WS_H1 += WSB; WS_CF += WSB; WS_KV += WSB; WS_CTX += WSB; WS_PART += WSB; WS_X1 += WSB; WS_H2 += WSB; WS_HID += WSB
WS_FLAG = 0x300000 + WSB
LOG2E = 1.4426950408889634

import struct
def f2u(x): return struct.unpack("<I", struct.pack("<f", x))[0]
def hx(x): return "0x%08x" % f2u(x)

def wave_sum(A, vr, sdst):
    for sh in (1, 2, 4, 8):
        A("s_nop 1")
        A(f"v_add_f32_dpp v{vr}, v{vr}, v{vr} row_shr:{sh} row_mask:0xf bank_mask:0xf bound_ctrl:0")
    A("s_nop 1")
    A(f"v_add_f32_dpp v{vr}, v{vr}, v{vr} row_bcast:15 row_mask:0xa bank_mask:0xf")
    A("s_nop 1")
    A(f"v_add_f32_dpp v{vr}, v{vr}, v{vr} row_bcast:31 row_mask:0xc bank_mask:0xf")
    A("s_nop 1")
    A(f"v_readlane_b32 s{sdst}, v{vr}, 63")
    A("s_nop 3")

def unpack_bf16(A, src, dst, n):
    for i in range(n):
        A(f"v_lshlrev_b32 v{dst+2*i}, 16, v{src+i}")
        A(f"v_and_b32 v{dst+2*i+1}, 0xffff0000, v{src+i}")

def layernorm_row(A, xf, n, gam, bet, st, tmp):
    N = 64 * n
    A(f"v_add_f32 v{tmp}, v{xf}, v{xf+1}")
    for i in range(2, n): A(f"v_add_f32 v{tmp}, v{tmp}, v{xf+i}")
    wave_sum(A, tmp, st)
    A(f"v_mov_b32 v{tmp}, {hx(-1.0/N)}")
    A(f"v_mul_f32 v{tmp}, s{st}, v{tmp}")
    for i in range(n): A(f"v_add_f32 v{xf+i}, v{xf+i}, v{tmp}")
    A(f"v_mul_f32 v{tmp}, v{xf}, v{xf}")
    for i in range(1, n): A(f"v_fmac_f32 v{tmp}, v{xf+i}, v{xf+i}")
    wave_sum(A, tmp, st)
    A(f"v_mov_b32 v{tmp}, {hx(1.0/N)}")
    A(f"v_mul_f32 v{tmp}, s{st}, v{tmp}")
    A(f"v_add_f32 v{tmp}, {hx(1e-5)}, v{tmp}")
    A(f"v_rsq_f32 v{tmp}, v{tmp}")
    A("s_nop 0")
    for i in range(n): A(f"v_mul_f32 v{xf+i}, v{xf+i}, v{tmp}")
    for i in range(n): A(f"v_fma_f32 v{xf+i}, v{xf+i}, v{gam+i}, v{bet+i}")

def round_bf16_inplace(A, r, n, tmp):
    for i in range(0, n, 2):
        A(f"v_cvt_pk_bf16_f32 v{tmp}, v{r+i}, v{r+i+1}")
        A(f"v_lshlrev_b32 v{r+i}, 16, v{tmp}")
        A(f"v_and_b32 v{r+i+1}, 0xffff0000, v{tmp}")

import os
PROF = os.environ.get("PROF", "") != ""
RT_ON = [False]
def stamp_dump(A, n, wave_sreg, wave):
    if not PROF: return
    L = A.new("pa")
    A("s_waitcnt lgkmcnt(0)")
    A(f"s_cmp_lg_u32 s{wave_sreg}, {wave}"); A(f"s_cbranch_scc1 {L}")
    A(f"s_load_dwordx2 s[76:77], s[0:1], {KA['ws']}"); A("s_waitcnt lgkmcnt(0)")
    A("s_and_b32 s77, s77, 0xffff"); A(f"s_mov_b32 s78, {WS_SIZE}"); A("s_mov_b32 s79, 0x20000")
    A(f"s_lshl_b32 s75, s2, 5"); A(f"s_add_u32 s75, s75, {WS_PROF + 4*8192}")
    A("v_mov_b32 v1, 0")
    for i in range(n): A(f"v_mov_b32 v{4+i}, s{80+2*i}")
    A("buffer_store_dwordx4 v[4:7], v1, s[76:79], s75 offen"); A("buffer_store_dwordx4 v[8:11], v1, s[76:79], s75 offen offset:16")
    A("s_waitcnt vmcnt(0)")
    A.label(L)
def stamp(A, i):
    if os.environ.get("DBGO") and RT_ON[0]:
        RT_ON.append(i)
        if RT_ON.count(i) > 1 or (i < 100 and len(RT_ON) > 2 and 2 in RT_ON[1:-1]): return
        if i >= 100: i -= 100
    if PROF:
        A(f"{'s_memrealtime' if os.environ.get('RT') == '1' and RT_ON[0] else 's_memtime'} s[{80+2*i}:{81+2*i}]")
        if i == 0: A("s_memrealtime s[96:97]")
def stamp_out(A, n, wg, wave_sreg, wave, base=0):
    if not PROF: return
    L = A.new("po")
    A("s_waitcnt lgkmcnt(0)")
    A(f"s_cmp_lg_u32 s2, {wg}"); A(f"s_cbranch_scc1 {L}")
    A(f"s_cmp_lg_u32 s{wave_sreg}, {wave}"); A(f"s_cbranch_scc1 {L}")
    A(f"s_load_dwordx2 s[76:77], s[0:1], {KA['dbg']}"); A("s_waitcnt lgkmcnt(0)")
    A("s_and_b32 s77, s77, 0xffff"); A("s_mov_b32 s78, 256"); A("s_mov_b32 s79, 0x20000")
    A("v_mov_b32 v1, 0")
    for i in range(1, n):
        A(f"s_sub_u32 s75, s{80+2*i}, s80"); A("v_mov_b32 v0, s75")
        A(f"buffer_store_dword v0, v1, s[76:79], 0 offen offset:{4*(base+i)}")
    A("s_memrealtime s[98:99]"); A("s_waitcnt lgkmcnt(0)")
    A("s_sub_u32 s75, s98, s96"); A("v_mov_b32 v0, s75")
    A(f"buffer_store_dword v0, v1, s[76:79], 0 offen offset:{4*base}")
    A("s_waitcnt vmcnt(0)")
    A.label(L)

WS_PROF = 0xF000000
def stamp_all(A, kidx, wave_sreg, wave):
    if not PROF: return
    L = A.new("pa")
    A(f"s_cmp_lg_u32 s{wave_sreg}, {wave}"); A(f"s_cbranch_scc1 {L}")
    A(f"s_load_dwordx2 s[76:77], s[0:1], {KA['ws']}"); A("s_memrealtime s[98:99]"); A("s_memtime s[94:95]"); A("s_waitcnt lgkmcnt(0)")
    A("s_and_b32 s77, s77, 0xffff"); A(f"s_mov_b32 s78, {WS_SIZE}"); A("s_mov_b32 s79, 0x20000")
    A(f"s_lshl_b32 s75, s2, 4"); A(f"s_add_u32 s75, s75, {WS_PROF + kidx*8192}")
    A("v_mov_b32 v1, 0")
    A("v_mov_b32 v4, s96"); A("v_mov_b32 v5, s98"); A("s_sub_u32 s74, s94, s80"); A("v_mov_b32 v6, s74"); A("s_getreg_b32 s74, hwreg(HW_REG_XCC_ID)"); A("v_mov_b32 v7, s74")
    A("buffer_store_dwordx4 v[4:7], v1, s[76:79], s75 offen")
    A("s_waitcnt vmcnt(0)")
    A.label(L)

class VM:
    def __init__(self, A): self.A = A; self.n = 0; self.tag = {}
    def issue(self, ins, tag=None):
        self.A(ins); self.n += 1
        if tag is not None: self.tag[tag] = self.n
    def need(self, *tags):
        last = max(self.tag[t] for t in tags)
        return min(63, self.n - last)
    def wait(self, *tags, extra=""):
        c = self.need(*tags)
        if getattr(self, "done", 0) >= max(self.tag[t] for t in tags) and not extra: return
        self.done = max(getattr(self, "done", 0), self.n - c)
        self.A(f"s_waitcnt vmcnt({c}) {extra}".strip())
```

```python
from gen_common import *
import gen_tail as T
SPIN_MAX = 30000

def sync(A, wflag, pflag, nmem, between=None, poll=True, pre=None):
    L0, L1, L2, L3 = A.new("sy"), A.new("sy"), A.new("sy"), A.new("sy")
    if pre: pre()
    else: A("s_waitcnt vmcnt(0)")
    A("s_barrier")
    A("s_cmp_lg_u32 s16, 0"); A(f"s_cbranch_scc1 {L1}")
    A("v_mov_b32 v3, 1"); A("v_mov_b32 v4, 0"); A("s_mov_b64 exec, 1")
    A(f"buffer_store_dword v3, v4, s[32:35], s{wflag} offen sc1")
    A("s_mov_b64 exec, -1")
    if between:
        A(f"s_branch {L0}")
        A.label(L1)
        between()
        A(f"s_branch {L3}")
        A.label(L0)
    else: A.label(L1)
    if not poll: return
    A("s_cmp_lg_u32 s16, 0"); A(f"s_cbranch_scc1 {L3}")
    A(f"v_min_u32 v4, {nmem-1}, v1"); A("v_lshlrev_b32 v4, 2, v4"); A("s_mov_b32 s46, 0")
    A.label(L2)
    A(f"buffer_load_dword v3, v4, s[32:35], s{pflag} offen sc1")
    A("s_waitcnt vmcnt(0)")
    A("v_cmp_ne_u32 vcc, 1, v3"); A(f"s_cbranch_vccz {L3}")
    A("s_sleep 1"); A("s_add_u32 s46, s46, 1"); A(f"s_cmp_lt_u32 s46, {SPIN_MAX}"); A(f"s_cbranch_scc1 {L2}")
    A.label(L3)
    A("s_waitcnt vmcnt(0)"); A("s_barrier")

def dma3(A, sptr, wbytes, rowB, wstride, ngrp, colshift):
    RP = 1024 // rowB
    srd(A, 24, sptr, wbytes)
    if rowB == 256:
        A("v_lshrrev_b32 v6, 4, v1"); A("v_and_b32 v5, 15, v1"); A("v_lshlrev_b32 v7, 2, v6"); A("v_xor_b32 v5, v5, v7")
    else:
        A("v_lshrrev_b32 v6, 2, v1"); A("v_and_b32 v5, 3, v1")
    A("v_lshlrev_b32 v5, 4, v5"); A(f"s_mov_b32 s18, {wstride}"); A("v_mul_lo_u32 v7, v6, s18"); A("v_add_u32 v10, v7, v5")
    A("s_sub_u32 s18, s16, 1"); A(f"s_mul_i32 s19, s18, {RP*wstride}"); A("s_lshr_b32 s20, s2, 4"); A(f"s_lshl_b32 s20, s20, {colshift}"); A("s_add_u32 s19, s19, s20")
    A("s_lshl_b32 m0, s18, 10")
    n = -(-ngrp // 3)
    for i in range(n):
        A("s_nop 0")
        A("buffer_load_dwordx4 v10, s[24:27], s19 offen lds")
        if i < n - 1: A(f"s_add_u32 s19, s19, {3*RP*wstride}"); A("s_add_u32 m0, m0, 3072")

def red4(A, part):
    P, X, GA, SB, CB, S_, TMP, XF = 32, 96, 104, 120, 136, 152, 168, 176
    if part == 'pre':
        red4_pre(A, X, GA, SB, CB); return
    A("s_lshl_b32 s18, s60, 18"); A("s_add_u32 s18, s18, s15"); A(f"s_add_u32 s18, s18, {WS_PART}")
    for ks in range(NKS):
        A("s_add_u32 s19, s18, 4096")
        A(f"buffer_load_dwordx4 v[{P+8*ks}:{P+8*ks+3}], v14, s[32:35], s18 offen sc1")
        A(f"buffer_load_dwordx4 v[{P+8*ks+4}:{P+8*ks+7}], v14, s[32:35], s19 offen sc1")
        if ks < NKS - 1: A("s_add_u32 s18, s18, 32768")
    red4_main(A, P, X, GA, SB, CB, S_, TMP, XF)

def red4_pre(A, X, GA, SB, CB):
    A("v_lshrrev_b32 v4, 4, v1"); A("v_bfe_u32 v5, v1, 3, 1"); A("v_and_b32 v6, 7, v1")
    A("v_lshlrev_b32 v14, 10, v4"); A("v_lshlrev_b32 v7, 9, v5"); A("v_add_u32 v14, v14, v7"); A("v_lshlrev_b32 v7, 4, v6"); A("v_add_u32 v14, v14, v7")
    A("v_lshlrev_b32 v8, 4, v4"); A("v_lshlrev_b32 v7, 2, v5"); A("v_add_u32 v8, v8, v7")
    A("v_lshlrev_b32 v15, 1, v8"); A("v_lshlrev_b32 v7, 10, v6"); A("v_add_u32 v15, v15, v7"); A("v_lshlrev_b32 v9, 2, v8")
    A("s_lshl_b32 s15, s16, 13"); A("s_lshl_b32 s18, s61, 7"); A("s_add_u32 s15, s15, s18")
    A("s_lshl_b32 s19, s60, 15"); A("s_lshl_b32 s18, s61, 13"); A("s_add_u32 s19, s19, s18"); A("s_lshl_b32 s18, s16, 8"); A("s_add_u32 s19, s19, s18")
    for u in range(2):
        A(f"buffer_load_dwordx2 v[{X+4*u}:{X+4*u+1}], v15, s[36:39], s19 offen offset:{128*u}"); A(f"buffer_load_dwordx2 v[{X+4*u+2}:{X+4*u+3}], v15, s[36:39], s19 offen offset:{128*u+16}")
    A("s_lshl_b32 s18, s16, 9")
    for (reg, m) in ((GA, 2), (SB, 3), (CB, 4)):
        A(f"s_add_u32 s19, s18, {WS_MOD + m*2048}")
        for u in range(2):
            A(f"buffer_load_dwordx4 v[{reg+8*u}:{reg+8*u+3}], v9, s[32:35], s19 offen offset:{256*u}"); A(f"buffer_load_dwordx4 v[{reg+8*u+4}:{reg+8*u+7}], v9, s[32:35], s19 offen offset:{256*u+32}")
    A("v_lshlrev_b32 v12, 4, v6"); A("s_lshl_b32 s18, s16, 2"); A("v_add_u32 v13, s18, v12")
    A(f"v_add_u32 v12, {LDSR}, v12"); A(f"v_add_u32 v13, {LDSR}, v13")

def red4_main(A, P, X, GA, SB, CB, S_, TMP, XF):
    for ks in range(NKS):
        A(f"s_waitcnt vmcnt({2*(NKS-1) - 2*ks})")
        if ks == 0: unpack_bf16(A, P, S_, 8)
        else:
            for u in range(2):
                unpack_bf16(A, P + 8*ks + 4*u, TMP, 4)
                for i in range(8): A(f"v_add_f32 v{S_+8*u+i}, v{S_+8*u+i}, v{TMP+i}")
    round_bf16_inplace(A, S_, 16, 10)
    A("s_waitcnt vmcnt(0)")
    unpack_bf16(A, X, XF, 8)
    for i in range(16): A(f"v_mul_f32 v{S_+i}, v{S_+i}, v{GA+i}")
    round_bf16_inplace(A, S_, 16, 10)
    for i in range(16): A(f"v_add_f32 v{XF+i}, v{XF+i}, v{S_+i}")
    for i in range(8): A(f"v_cvt_pk_bf16_f32 v{X+i}, v{XF+2*i}, v{XF+2*i+1}")
    A("s_lshl_b32 s19, s60, 15"); A("s_add_u32 s19, s19, s15"); A(f"s_add_u32 s18, s19, {WS_X1}")
    A(f"buffer_store_dwordx4 v[{X}:{X+3}], v14, s[32:35], s18 offen sc1"); A("s_add_u32 s18, s18, 4096")
    A(f"buffer_store_dwordx4 v[{X+4}:{X+7}], v14, s[32:35], s18 offen sc1")
    unpack_bf16(A, X, XF, 8)
    for i in range(16): A(f"v_add_f32 v{CB+i}, 1.0, v{CB+i}")
    def rowsum(t, off):
        A("s_nop 1"); A(f"v_add_f32_dpp v{t}, v{t}, v{t} row_ror:8 row_mask:0xf bank_mask:0xf")
        A(f"v_mov_b32 v11, v{t}"); A("s_nop 1"); A(f"v_permlane16_swap_b32 v{t}, v11"); A("s_nop 1"); A(f"v_add_f32 v{t}, v{t}, v11")
        A(f"v_mov_b32 v11, v{t}"); A("s_nop 1"); A(f"v_permlane32_swap_b32 v{t}, v11"); A("s_nop 1"); A(f"v_add_f32 v{t}, v{t}, v11")
        A(f"ds_write_b32 v13, v{t} offset:{off}")
        A("s_waitcnt lgkmcnt(0)"); A("s_barrier")
        A(f"ds_read_b128 v[56:59], v12 offset:{off}")
        A("s_waitcnt lgkmcnt(0)")
        A("v_add_f32 v56, v56, v57"); A("v_add_f32 v58, v58, v59"); A(f"v_add_f32 v{t}, v56, v58")
    t = 10
    A(f"v_add_f32 v{t}, v{XF}, v{XF+1}")
    for i in range(2, 16): A(f"v_add_f32 v{t}, v{t}, v{XF+i}")
    rowsum(t, 0)
    A(f"v_mul_f32 v{t}, {hx(-1.0/512)}, v{t}")
    for i in range(16): A(f"v_add_f32 v{XF+i}, v{XF+i}, v{t}")
    A(f"v_mul_f32 v{t}, v{XF}, v{XF}")
    for i in range(1, 16): A(f"v_fmac_f32 v{t}, v{XF+i}, v{XF+i}")
    rowsum(t, 128)
    A(f"v_mul_f32 v{t}, {hx(1.0/512)}, v{t}"); A(f"v_add_f32 v{t}, {hx(1e-5)}, v{t}"); A(f"v_rsq_f32 v{t}, v{t}"); A("s_nop 0")
    for i in range(16): A(f"v_mul_f32 v{XF+i}, v{XF+i}, v{t}")
    for i in range(16): A(f"v_fma_f32 v{XF+i}, v{XF+i}, v{CB+i}, v{SB+i}")
    for i in range(8): A(f"v_cvt_pk_bf16_f32 v{X+i}, v{XF+2*i}, v{XF+2*i+1}")
    A(f"s_add_u32 s18, s19, {WS_H2}")
    A(f"buffer_store_dwordx4 v[{X}:{X+3}], v14, s[32:35], s18 offen sc1"); A("s_add_u32 s18, s18, 4096")
    A(f"buffer_store_dwordx4 v[{X+4}:{X+7}], v14, s[32:35], s18 offen sc1")

NKS = 4
LDSR = 131072

def gen_fused(name="tail_kernel"):
    A = Asm(); E = f"{name}_end"
    RT_ON[0] = True
    A("s_cmp_ge_u32 s2, 256"); A(f"s_cbranch_scc1 {E}")
    if os.environ.get("SPF", "0") == "1" and os.environ.get("SPFA", "1") == "1": code_pf(A, "tail_kernel", "tail_kernel_end", 0, 8, 2, 252, 70, True)
    stamp(A, 0)
    A(f"s_load_dwordx2 s[4:5], s[0:1], {KA['wo']}"); A(f"s_load_dwordx2 s[10:11], s[0:1], {KA['ws']}")
    A(f"s_load_dwordx2 s[6:7], s[0:1], {KA['w1']}"); A(f"s_load_dwordx2 s[8:9], s[0:1], {KA['w2']}")
    A(f"s_load_dwordx2 s[12:13], s[0:1], {KA['out']}"); A(f"s_load_dwordx2 s[56:57], s[0:1], {KA['x']}")
    A("v_lshrrev_b32 v1, 6, v0"); A("s_nop 0"); A("v_readfirstlane_b32 s16, v1"); A("v_and_b32 v1, 63, v0"); A("v_lshlrev_b32 v2, 4, v1")
    A("s_waitcnt lgkmcnt(0)")
    srd(A, 24, 4, 4096*512*2); srd(A, 32, 10, WS_SIZE)
    (T.gen_oproj4 if os.environ.get('OP4') else T.gen_oproj3)(F=A, part=None)
    stamp(A, 2)
    A("s_and_b32 s58, s2, 3"); A("s_lshr_b32 s59, s2, 6"); A("s_lshl_b32 s59, s59, 2"); A("s_add_u32 s58, s58, s59")
    A("s_bfe_u32 s59, s2, 0x10002"); A("s_lshl_b32 s59, s59, 3"); A("s_bfe_u32 s60, s2, 0x30003"); A("s_add_u32 s59, s59, s60")
    A("s_lshl_b32 s60, s59, 2"); A("s_lshr_b32 s61, s58, 2"); A("s_add_u32 s60, s60, s61"); A("s_and_b32 s61, s58, 3")
    A("s_lshl_b32 s63, s59, 7"); A(f"s_add_u32 s63, s63, {WS_FLAG + 5120}"); A("s_lshl_b32 s62, s58, 2"); A("s_add_u32 s62, s62, s63")
    def w1dma():
        L = A.new("w1")
        A("s_cmp_ge_u32 s2, 224"); A(f"s_cbranch_scc1 {L}")
        dma3(A, 6, 512*1792*2, 256, 3584, 128, 8)
        A.label(L)
    def redpre():
        srd(A, 36, 56, 2048*512*2)
        red4(A, 'pre')
        A("s_waitcnt vmcnt(16)")
    sync(A, 62, 63, 16, w1dma, True, redpre)
    stamp(A, 3)
    red4(A, 'main')
    stamp(A, 4)
    A("s_lshr_b32 s62, s60, 2"); A("s_lshl_b32 s62, s62, 7"); A("s_and_b32 s63, s60, 3"); A("s_lshl_b32 s63, s63, 4"); A("s_add_u32 s62, s62, s63")
    A("s_lshl_b32 s63, s61, 2"); A("s_add_u32 s62, s62, s63"); A(f"s_add_u32 s62, s62, {WS_FLAG + 1024}")
    A("s_and_b32 s63, s2, 15"); A("s_lshl_b32 s63, s63, 7"); A(f"s_add_u32 s63, s63, {WS_FLAG + 1024}")
    def w2dma():
        dma3(A, 8, 1792*512*2, 64, 1024, 112, 6)
    LN3, LP3 = A.new("n3"), A.new("p3")
    A("s_cmp_ge_u32 s2, 224"); A(f"s_cbranch_scc1 {LN3}")
    sync(A, 62, 63, 16)
    stamp(A, 5)
    T.gen_mlp12(F=A, part='main')
    stamp(A, 6)
    A("s_and_b32 s63, s2, 15"); A("s_lshl_b32 s63, s63, 7"); A(f"s_add_u32 s63, s63, {WS_FLAG + 3072}")
    A("s_lshr_b32 s62, s2, 4"); A("s_lshl_b32 s62, s62, 2"); A("s_add_u32 s62, s62, s63")
    A(f"s_branch {LP3}")
    A.label(LN3)
    sync(A, 62, 63, 16, None, poll=False)
    A("s_and_b32 s63, s2, 15"); A("s_lshl_b32 s63, s63, 7"); A(f"s_add_u32 s63, s63, {WS_FLAG + 3072}")
    A("s_add_u32 s62, s63, 124")
    A.label(LP3)
    sync(A, 62, 63, 14, w2dma)
    stamp(A, 7)
    srd(A, 36, 12, 2048*512*2)
    T.gen_mlp2(F=A, part='main')
    if PROF:
        A("s_waitcnt vmcnt(0)"); stamp(A, 1)
    if os.environ.get("RT") == "1": stamp_dump(A, 8, 16, 0)
    else: stamp_out(A, 8, int(os.environ.get("PWG", "37")), 16, 0, 0)
    RT_ON[0] = False
    A.label(E); A("s_endpgm")
    return kernel_head(name) + A.text() + kernel_desc(name, 512, accum=256), f"; @launch kernel={name} grid=(256,1,1) block=(256,1,1) lds={LDSR + 1024}\n"
```

```python
from gen_common import *
STC = os.environ.get("STC_TL", "sc1")

def gemm(name, nwg, S, MR, NB, rowB, dmap, wkey, wstride, wbytes, C, R, ids, act, epi, lds, w_is_A=True, WD=2, F=None, part=None, pre=None, ring=None, passes=1, mid=None):
    fused = F is not None
    A = F if fused else Asm(); E = f"{name}_end"
    LF = " sc1" if (fused and part == 'main') else ""
    if not fused:
        A(f"s_cmp_ge_u32 s2, {nwg}"); A(f"s_cbranch_scc1 {E}")
        stamp(A, 0)
        A(f"s_load_dwordx2 s[4:5], s[0:1], {KA[wkey]}")
        A(f"s_load_dwordx2 s[10:11], s[0:1], {KA['ws']}")
        A(f"s_load_dwordx2 s[12:13], s[0:1], {KA['out']}")
        A("v_lshrrev_b32 v1, 6, v0"); A("s_nop 0"); A("v_readfirstlane_b32 s16, v1"); A("v_and_b32 v1, 63, v0"); A("v_lshlrev_b32 v2, 4, v1")
    ids(A)
    if not fused:
        A("s_waitcnt lgkmcnt(0)")
        srd(A, 24, 4, wbytes); srd(A, 32, 10, WS_SIZE); srd(A, 36, 12, 2048*512*2)
    RP, LP = 1024 // rowB, rowB // 16
    rows_chunk = 16 * S // C; nper = rows_chunk * rowB // 1024 // 4; spc = S // C
    lg = {4: 2, 8: 3, 16: 4}[LP]
    A(f"v_lshrrev_b32 v6, {lg}, v1"); A(f"v_and_b32 v5, {LP-1}, v1")
    if rowB == 256: A("v_lshlrev_b32 v7, 2, v6"); A("v_xor_b32 v5, v5, v7")
    if rowB == 128: A("v_lshlrev_b32 v7, 1, v6"); A("v_and_b32 v7, 4, v7"); A("v_xor_b32 v5, v5, v7")
    A("v_lshlrev_b32 v5, 4, v5")
    A(f"s_mul_i32 s18, s16, {nper*RP}"); A("v_add_u32 v7, s18, v6"); A(f"s_mov_b32 s18, {wstride}"); A("v_mul_lo_u32 v7, v7, s18")
    A("v_add_u32 v10, v7, v5")
    nv = min(4, nper)
    for j in range(1, nv): A(f"v_add_u32 v{10+j}, {j*(RP*wstride-1024)}, v10")
    vm = VM(A)
    def dma(c, j):
        if part == 'main': return
        if j % 4 == 0:
            A(f"s_mul_i32 s18, s16, {nper*1024}"); A(f"s_add_u32 s19, s20, {((c % C)*rows_chunk + j*RP)*wstride + (c // C)*rowB}")
            A(f"s_add_u32 m0, s18, {(c % ring if ring else c)*rows_chunk*rowB + j*1024}"); A("s_nop 0")
        vm.issue(f"buffer_load_dwordx4 v{10+j%4}, s[24:27], s19 offen offset:{1024*(j%4)} lds", ('D', c))
    if part == 'wdma':
        for c in range(C):
            for j in range(nper): dma(c, j)
        return
    AB = 256
    nact = S * MR
    if pre: pre(A)
    def aload(i):
        s_, mr = i // MR, i % MR; slot = i % R
        off = mr * act + s_ * 1024
        A(f"s_add_u32 s47, s21, {off & ~4095}")
        vm.issue(f"buffer_load_dwordx4 a[{4*slot}:{4*slot+3}], v2, s[32:35], s47 offen offset:{off & 4095}{LF}", ('A', i))
    for j in range(nper): dma(0, j)
    npre = min(R, nact)
    for i in range(min(8, npre)): aload(i)
    for j in range(nper): dma(1, j)
    SR = ring * spc if ring else S
    win = 65536 // (16 * rowB); nwin = (SR + win - 1) // win
    A("v_lshrrev_b32 v4, 4, v1"); A("v_bfe_u32 v5, v1, 2, 2"); A("v_and_b32 v6, 3, v1")
    A(f"v_lshrrev_b32 v7, 1, v4"); A(f"v_lshlrev_b32 v7, {2 if dmap else 3}, v7"); A("v_add_u32 v7, v7, v5"); A(f"v_mul_u32_u24 v7, {rowB}, v7")
    A("v_and_b32 v8, 1, v4"); A("v_lshlrev_b32 v8, 1, v8"); A("v_lshrrev_b32 v9, 1, v6"); A("v_add_u32 v8, v8, v9"); A("v_lshlrev_b32 v8, 4, v8")
    A("v_and_b32 v9, 1, v6"); A("v_lshlrev_b32 v9, 3, v9"); A("v_add_u32 v8, v8, v9"); A("v_add_u32 v7, v7, v8")
    if rowB == 128: A("v_lshrrev_b32 v5, 1, v5")
    TA = 16
    for nb in range(NB):
        if rowB == 64: A(f"v_mov_b32 v{TA+nb}, v7")
        else: A(f"v_xor_b32 v8, {nb}, v5"); A("v_lshlrev_b32 v8, 6, v8"); A(f"v_add_u32 v{TA+nb}, v7, v8")
        for wn in range(1, nwin): A(f"v_add_u32 v{TA+wn*NB+nb}, {wn*65536}, v{TA+nb}")
    sec = (8 if dmap else 4) * rowB
    WB = [32 + 4*NB*i for i in range(WD)]; ACC = 128
    lg_n = [0]; lg_tag = {}
    def wreads(s_, nb):
        sr = s_ % SR
        ar = TA + (sr // win) * NB + nb; off = (sr % win) * 16 * rowB; r = WB[s_ % WD] + 4*nb
        A(f"ds_read_b64_tr_b16 v[{r}:{r+1}], v{ar} offset:{off}"); A(f"ds_read_b64_tr_b16 v[{r+2}:{r+3}], v{ar} offset:{off+sec}")
        lg_n[0] += 2; lg_tag[(s_, nb)] = lg_n[0]
    dq = [(c, j) for c in range(2, C * passes) for j in range(nper)]
    if part == 'main': dq = []
    midq = []
    nxt_a = min(8, npre)
    nrd = 2 * NB; cbar = 0
    SV = S * passes
    for s_ in range(SV):
        if s_ == 0:
            if part != 'main': vm.wait(('D', 0)); A("s_barrier"); stamp(A, 1)
            for q in range(WD - 1):
                for nb in range(NB): wreads(q, nb)
        if part != 'main' and (s_ + WD - 1) % spc == 0 and s_ + WD - 1 < SV:
            vm.wait(('D', (s_ + WD - 1) // spc)); A("s_barrier")
            cbar = (s_ + WD - 1) // spc
        if s_ < S: vm.wait(*[('A', s_*MR + mr) for mr in range(MR)])
        if mid and s_ == S + 1: midq = mid(A, ACC)
        if os.environ.get("DBGO") and ring and s_ in (8, 16, 32, 48, 63): stamp(A, {8: 103, 16: 104, 32: 105, 48: 106, 63: 107}[s_])
        k = 0
        for nb in range(NB):
            for mr in range(MR):
                if mr == 0:
                    A(f"s_waitcnt lgkmcnt({min(15, lg_n[0] - lg_tag[(s_, nb)])})")
                slot = ((s_ % S)*MR + mr) % R
                w = f"v[{WB[s_%WD]+4*nb}:{WB[s_%WD]+4*nb+3}]"; x_ = f"a[{4*slot}:{4*slot+3}]"
                d0 = ACC + 16*((s_ // S)*NB*MR + mr*NB + nb); d = f"v[{d0}:{d0+15}]"
                a_, b_ = (w, x_) if w_is_A else (x_, w)
                A(f"v_mfma_f32_32x32x16_bf16 {d}, {a_}, {b_}, {'0' if s_ % S == 0 else d}")
                if mr == MR - 1 and s_ + WD - 1 < SV: wreads(s_ + WD - 1, nb)
                for _ in range(2):
                    if midq:
                        it = midq.pop(0)
                        if it[0] == 's': vm.issue(it[1])
                        else: A(it[1])
                if k == 0 or (MR*NB >= 4 and k == 2):
                    lim = min(nact, max(npre, (s_ - 1) * MR + MR - 1 + R + 1 - 0) if s_ >= 1 else npre)
                    lim = min(nact, (s_ * MR) + R) if s_ >= 1 else min(nact, npre)
                    for _ in range(2 if nxt_a < npre else MR):
                        if nxt_a < lim: aload(nxt_a); nxt_a += 1
                if k == MR*NB - 1 and dq:
                    if ring:
                        for _ in range(2):
                            if dq and (dq[0][0] < ring or dq[0][0] - ring + 2 <= cbar): dma(*dq.pop(0))
                    else:
                        dma(*dq.pop(0))
                        if nper > spc and dq: dma(*dq.pop(0))
                k += 1
    assert nxt_a == nact and not dq, (nxt_a, nact, dq)
    if not fused: stamp(A, 2)
    A("s_nop 7"); A("s_nop 7")
    epi(A, ACC, vm)
    if fused: return
    if PROF: A("s_waitcnt vmcnt(0)")
    stamp(A, 3)
    stamp_out(A, 4, 37, 16, 0, 0)
    A.label(E); A("s_endpgm")
    return kernel_head(name) + A.text() + kernel_desc(name, 512, accum=256), f"; @launch kernel={name} grid=({nwg},1,1) block=(256,1,1) lds={lds}\n"

def gemm2(name, nwg, S, MR, phases, wkey, wstride, wbytes, C, ids, act, epi_addr, epi_block, lds, D=5, prof_wg=37, F=None, part=None):
    NB = 4; rowB = 256
    fused = F is not None
    A = F if fused else Asm(); E = f"{name}_end"
    LF = " sc1" if (fused and part == 'main') else ""
    if not fused:
        A(f"s_cmp_ge_u32 s2, {nwg}"); A(f"s_cbranch_scc1 {E}")
        stamp(A, 0)
        A(f"s_load_dwordx2 s[4:5], s[0:1], {KA[wkey]}")
        A(f"s_load_dwordx2 s[10:11], s[0:1], {KA['ws']}")
        A("v_lshrrev_b32 v1, 6, v0"); A("s_nop 0"); A("v_readfirstlane_b32 s16, v1"); A("v_and_b32 v1, 63, v0"); A("v_lshlrev_b32 v2, 4, v1")
    ids(A)
    rows_chunk = 16 * S // C; nper = rows_chunk * rowB // 1024 // 4; spc = S // C
    A("v_lshrrev_b32 v6, 4, v1"); A("v_and_b32 v5, 15, v1"); A("v_lshlrev_b32 v7, 2, v6"); A("v_xor_b32 v5, v5, v7"); A("v_lshlrev_b32 v5, 4, v5")
    A(f"s_mul_i32 s18, s16, {nper*4}"); A("v_add_u32 v7, s18, v6"); A(f"s_mov_b32 s18, {wstride}"); A("v_mul_lo_u32 v7, v7, s18")
    A("v_add_u32 v10, v7, v5")
    for j in range(1, min(4, nper)): A(f"v_add_u32 v{10+j}, {j*(4*wstride-1024)}, v10")
    if not fused:
        A("s_waitcnt lgkmcnt(0)")
        srd(A, 24, 4, wbytes); srd(A, 32, 10, WS_SIZE)
    vm = VM(A)
    def dma(c, j):
        if part == 'main': return
        if j % 4 == 0:
            A(f"s_mul_i32 s18, s16, {nper*1024}"); A(f"s_add_u32 s19, s20, {(c*rows_chunk + j*4)*wstride}")
            A(f"s_add_u32 m0, s18, {c*rows_chunk*rowB + j*1024}"); A("s_nop 0")
        vm.issue(f"buffer_load_dwordx4 v{10+j%4}, s[24:27], s19 offen offset:{1024*(j%4)} lds", ('D', c))
    if part == 'wdma':
        for c in range(C):
            for j in range(nper): dma(c, j)
        return
    nact = S * MR
    def aload(i):
        s_, mr = i // MR, i % MR
        off = mr * act + s_ * 1024
        A(f"s_add_u32 s47, s21, {off & ~4095}")
        vm.issue(f"buffer_load_dwordx4 a[{4*i}:{4*i+3}], v2, s[32:35], s47 offen offset:{off & 4095}{LF}", ('A', i))
    for j in range(nper): dma(0, j)
    for i in range(spc * MR): aload(i)
    for j in range(nper): dma(1, j)
    rest = []
    for c in range(1, C):
        if c >= 2 and part != 'main': rest += [('d', c, j) for j in range(nper)]
        rest += [('a', i) for i in range(c*spc*MR, (c+1)*spc*MR)]
    A("v_lshrrev_b32 v4, 4, v1"); A("v_bfe_u32 v5, v1, 2, 2"); A("v_and_b32 v6, 3, v1")
    A("v_lshrrev_b32 v7, 1, v4"); A("v_lshlrev_b32 v7, 2, v7"); A("v_add_u32 v7, v7, v5"); A(f"v_mul_u32_u24 v7, {rowB}, v7")
    A("v_and_b32 v8, 1, v4"); A("v_lshlrev_b32 v8, 1, v8"); A("v_lshrrev_b32 v9, 1, v6"); A("v_add_u32 v8, v8, v9"); A("v_lshlrev_b32 v8, 4, v8")
    A("v_and_b32 v9, 1, v6"); A("v_lshlrev_b32 v9, 3, v9"); A("v_add_u32 v8, v8, v9"); A("v_add_u32 v7, v7, v8")
    nwin = (S + 15) // 16; TA = 16
    for nb in range(NB):
        A(f"v_xor_b32 v8, {nb}, v5"); A("v_lshlrev_b32 v8, 6, v8"); A(f"v_add_u32 v{TA+nb}, v7, v8")
        for wn in range(1, nwin): A(f"v_add_u32 v{TA+wn*NB+nb}, {wn*65536}, v{TA+nb}")
    epi_addr(A)
    ACC = 128; RING = 8; WB = 32
    uses = [(s_, nb) for ph in phases for s_ in range(S) for nb in ph]
    lg_n = [0]; lg_tag = {}; landed = set()
    def wread(i):
        s_, nb = uses[i]
        c = s_ // spc
        if c not in landed and part != 'main':
            vm.wait(('D', c)); A("s_barrier"); landed.add(c)
            if c == 0: stamp(A, 1)
        ar = TA + (s_ // 16) * NB + nb; off = (s_ % 16) * 16 * rowB; r = WB + 4*(i % RING)
        A(f"ds_read_b64_tr_b16 v[{r}:{r+1}], v{ar} offset:{off}"); A(f"ds_read_b64_tr_b16 v[{r+2}:{r+3}], v{ar} offset:{off+8*rowB}")
        lg_n[0] += 2; lg_tag[i] = lg_n[0]
    for i in range(D): wread(i)
    epq = []
    done_nb = []
    phase_end = {}
    k = 0
    for ph in phases:
        k += S * len(ph); phase_end[k - 1] = ph
    hold = 0
    nmf = len(uses) * MR; mi = 0
    for i, (s_, nb) in enumerate(uses):
        first_phase = i < S * len(phases[0])
        if first_phase: vm.wait(*[('A', s_*MR + mr) for mr in range(MR)])
        A(f"s_waitcnt lgkmcnt({min(15, lg_n[0] - lg_tag[i])})")
        for mr in range(MR):
            w = f"v[{WB+4*(i%RING)}:{WB+4*(i%RING)+3}]"; x_ = f"a[{4*(s_*MR+mr)}:{4*(s_*MR+mr)+3}]"
            d0 = ACC + 16*(mr*NB + nb); d = f"v[{d0}:{d0+15}]"
            A(f"v_mfma_f32_32x32x16_bf16 {d}, {w}, {x_}, {'0' if s_ == 0 else d}")
            mi += 1
            if mr == MR - 1 and i + D < len(uses): wread(i + D)
            if rest:
                for _ in range(2 if MR == 2 else 1):
                    if rest:
                        op = rest.pop(0)
                        if op[0] == 'd': dma(op[1], op[2])
                        else: aload(op[1])
            elif hold > 0: hold -= 1
            elif epq:
                left = min(j for j in phase_end if j >= i) - i + 1
                per = max(1, min(5, -(-len(epq) // max(1, left * MR - 3))))
                n = 0
                while epq and n < per:
                    it = epq.pop(0)
                    if it[0] == 's':
                        vm.issue(it[1]); n += 2
                    else: A(it[1]); n += 1
        if i in phase_end:
            assert not rest
            for nb2 in phase_end[i]:
                for mr in range(MR): epq += epi_block(ACC + 16*(mr*NB + nb2), mr, nb2)
            hold = 3
    if not fused: stamp(A, 2)
    A("s_nop 7"); A("s_nop 7")
    for it in epq:
        if it[0] == 's': vm.issue(it[1])
        else: A(it[1])
    if fused: return
    if PROF: A("s_waitcnt vmcnt(0)")
    stamp(A, 3)
    stamp_out(A, 4, prof_wg, 16, 0, 0)
    A.label(E); A("s_endpgm")
    return kernel_head(name) + A.text() + kernel_desc(name, 512, accum=256), f"; @launch kernel={name} grid=({nwg},1,1) block=(256,1,1) lds={lds}\n"

def gen_oproj2(F=None, part=None):
    def ids(A):
        A("s_and_b32 s15, s2, 7"); A("s_bfe_u32 s14, s2, 0x30003"); A("s_lshr_b32 s17, s2, 6")
        A("s_lshl_b32 s20, s15, 19"); A("s_lshl_b32 s18, s17, 8"); A("s_add_u32 s20, s20, s18")
        A("s_lshl_b32 s21, s14, 3"); A("s_lshl_b32 s18, s16, 1"); A("s_add_u32 s21, s21, s18")
        A("s_mov_b32 s22, s21")
        A("s_lshl_b32 s21, s21, 18"); A("s_lshl_b32 s18, s15, 15"); A("s_add_u32 s21, s21, s18"); A(f"s_add_u32 s21, s21, {WS_CTX}")
    def epi_addr(A):
        A("s_lshl_b32 s40, s22, 18"); A("s_lshl_b32 s41, s15, 15"); A("s_add_u32 s40, s40, s41"); A("s_lshl_b32 s41, s17, 13"); A("s_add_u32 s40, s40, s41")
        A(f"s_add_u32 s40, s40, {WS_PART}"); A("s_add_u32 s41, s40, 4096")
        A(f"s_add_u32 s42, s40, {1 << 18}"); A("s_add_u32 s43, s42, 4096")
    def epi_block(a0, mr, nb):
        it = []
        for t in range(2):
            for i in range(4*t, 4*t+4): it.append(('v', f"v_cvt_pk_bf16_f32 v{a0+i}, v{a0+2*i}, v{a0+2*i+1}"))
        for t in range(2):
            f = 2*nb + t
            it.append(('s', f"buffer_store_dwordx4 v[{a0+4*t}:{a0+4*t+3}], v2, s[32:35], s{40 + 2*mr + f//4} offen offset:{(f%4)*1024} {STC}"))
        return it
    return gemm2("oproj_kernel", 256, 32, 2, [(0, 1), (2,), (3,)], 'wo', 1024, 4096*512*2, 4, ids, 262144, epi_addr, epi_block, 131072, F=F, part=part)

def gen_oproj3(F=None, part=None):
    def ids(A):
        A("s_and_b32 s15, s2, 3"); A("s_bfe_u32 s14, s2, 0x10002"); A("s_lshl_b32 s14, s14, 3"); A("s_bfe_u32 s17, s2, 0x30003"); A("s_add_u32 s14, s14, s17"); A("s_lshr_b32 s17, s2, 6")
        A("s_lshl_b32 s20, s15, 20"); A("s_lshl_b32 s18, s17, 8"); A("s_add_u32 s20, s20, s18")
        A("s_lshl_b32 s22, s14, 2"); A("s_add_u32 s22, s22, s16")
        A("s_lshl_b32 s21, s22, 18"); A("s_lshl_b32 s18, s15, 16"); A("s_add_u32 s21, s21, s18"); A(f"s_add_u32 s21, s21, {WS_CTX}")
    def epi(A, ACC, vm):
        A("s_lshl_b32 s18, s22, 18"); A("s_lshl_b32 s19, s15, 15"); A("s_add_u32 s18, s18, s19"); A("s_lshl_b32 s19, s17, 13"); A("s_add_u32 s18, s18, s19")
        A(f"s_add_u32 s18, s18, {WS_PART}"); A("s_add_u32 s19, s18, 4096")
        for nb in range(4):
            a0 = ACC + 16*nb
            for i in range(8): A(f"v_cvt_pk_bf16_f32 v{a0+i}, v{a0+2*i}, v{a0+2*i+1}")
            for t in range(2):
                f = 2*nb + t
                A(f"buffer_store_dwordx4 v[{a0+4*t}:{a0+4*t+3}], v2, s[32:35], s{18 + f//4} offen offset:{(f%4)*1024} {STC}")
    return gemm("oproj_kernel", 256, 64, 1, 4, 256, True, 'wo', 1024, 4096*512*2, 8, int(os.environ.get("OPR", "32")), ids, 0, epi, 131072, WD=3, F=F, part=part, ring=4)

def gen_oproj4(F=None, part=None):
    def ids(A):
        A("s_and_b32 s15, s2, 3"); A("s_bfe_u32 s14, s2, 0x10002"); A("s_lshl_b32 s14, s14, 3"); A("s_bfe_u32 s17, s2, 0x30003"); A("s_add_u32 s14, s14, s17"); A("s_lshr_b32 s17, s2, 6")
        A("s_lshl_b32 s20, s15, 20"); A("s_lshl_b32 s18, s17, 8"); A("s_add_u32 s20, s20, s18")
        A("s_lshl_b32 s22, s14, 2"); A("s_add_u32 s22, s22, s16")
        A("s_lshl_b32 s21, s22, 18"); A("s_lshl_b32 s18, s15, 16"); A("s_add_u32 s21, s21, s18"); A(f"s_add_u32 s21, s21, {WS_CTX}")
        A("s_lshl_b32 s40, s22, 18"); A("s_lshl_b32 s41, s15, 15"); A("s_add_u32 s40, s40, s41"); A("s_lshl_b32 s41, s17, 13"); A("s_add_u32 s40, s40, s41")
        A(f"s_add_u32 s40, s40, {WS_PART}"); A("s_add_u32 s41, s40, 4096")
    def blk(ACC, half):
        it = []
        for nb in range(2*half, 2*half + 2):
            a0 = ACC + 16*nb
            for t in range(2):
                for i in range(4*t, 4*t + 4): it.append(('v', f"v_cvt_pk_bf16_f32 v{a0+i}, v{a0+2*i}, v{a0+2*i+1}"))
            for t in range(2):
                f = 2*nb + t
                it.append(('s', f"buffer_store_dwordx4 v[{a0+4*t}:{a0+4*t+3}], v2, s[32:35], s{40 + f//4} offen offset:{(f%4)*1024} {STC}"))
        return it
    def mid(A, ACC): return blk(ACC, 0)
    def epi(A, ACC, vm):
        for it in blk(ACC, 1): A(it[1])
    return gemm("oproj_kernel", 256, 64, 1, 2, 128, True, 'wo', 1024, 4096*512*2, 8, 64, ids, 0, epi, 131072, WD=int(os.environ.get("OWD", "4")), F=F, part=part, ring=8, passes=2, mid=mid)

def gen_mlp12(F=None, part=None):
    def ids(A):
        A("s_and_b32 s14, s2, 15"); A("s_lshr_b32 s17, s2, 4")
        A("s_lshl_b32 s20, s17, 8")
        A("s_lshl_b32 s22, s14, 2"); A("s_add_u32 s22, s22, s16")
        A("s_lshl_b32 s21, s22, 15"); A(f"s_add_u32 s21, s21, {WS_H2}")
    def epi_addr(A):
        A(f"s_mul_i32 s40, s22, {112*1024}"); A("s_lshl_b32 s41, s17, 13"); A("s_add_u32 s40, s40, s41"); A(f"s_add_u32 s40, s40, {WS_HID}"); A("s_add_u32 s41, s40, 4096")
    def epi_block(a0, mr, nb):
        it = []; T = 64 + 16 * (nb % 2)
        for i in range(16): it.append(('v', f"v_mul_f32 v{T+i}, {hx(-LOG2E)}, v{a0+i}"))
        for i in range(16): it.append(('v', f"v_exp_f32 v{T+i}, v{T+i}"))
        for i in range(16): it.append(('v', f"v_add_f32 v{T+i}, 1.0, v{T+i}"))
        for i in range(16): it.append(('v', f"v_rcp_f32 v{T+i}, v{T+i}"))
        for i in range(16): it.append(('v', f"v_mul_f32 v{a0+i}, v{a0+i}, v{T+i}"))
        for i in range(8): it.append(('v', f"v_cvt_pk_bf16_f32 v{a0+i}, v{a0+2*i}, v{a0+2*i+1}"))
        for t in range(2):
            f = 2*nb + t
            it.append(('s', f"buffer_store_dwordx4 v[{a0+4*t}:{a0+4*t+3}], v2, s[32:35], s{40 + f//4} offen offset:{(f%4)*1024} {STC}"))
        return it
    return gemm2("mlp1_kernel", 224, 32, 1, [(0, 1), (2,), (3,)], 'w1', 3584, 512*1792*2, 4, ids, 0, epi_addr, epi_block, 131072, D=6, F=F, part=part)

def gen_oproj():
    def ids(A):
        A("s_and_b32 s15, s2, 7"); A("s_bfe_u32 s14, s2, 0x30003"); A("s_lshr_b32 s17, s2, 6")
        A("s_lshl_b32 s20, s15, 19"); A("s_lshl_b32 s18, s17, 8"); A("s_add_u32 s20, s20, s18")
        A("s_lshl_b32 s21, s14, 3"); A("s_lshl_b32 s18, s16, 1"); A("s_add_u32 s21, s21, s18")
        A("s_mov_b32 s22, s21")
        A("s_lshl_b32 s21, s21, 18"); A("s_lshl_b32 s18, s15, 15"); A("s_add_u32 s21, s21, s18"); A(f"s_add_u32 s21, s21, {WS_CTX}")
    def epi(A, ACC, vm):
        A("s_lshl_b32 s18, s22, 18"); A("s_lshl_b32 s19, s15, 15"); A("s_add_u32 s18, s18, s19"); A("s_lshl_b32 s19, s17, 13"); A("s_add_u32 s18, s18, s19")
        A(f"s_add_u32 s18, s18, {WS_PART}"); A("s_add_u32 s19, s18, 4096")
        A(f"s_add_u32 s40, s18, {1 << 18}"); A("s_add_u32 s41, s40, 4096")
        for mr in range(2):
            for nb in range(4):
                a0 = ACC + 16*(mr*4 + nb)
                for i in range(8): A(f"v_cvt_pk_bf16_f32 v{a0+i}, v{a0+2*i}, v{a0+2*i+1}")
                for t in range(2):
                    f = 2*nb + t; sb = (18 if mr == 0 else 40) + f // 4
                    A(f"buffer_store_dwordx4 v[{a0+4*t}:{a0+4*t+3}], v2, s[32:35], s{sb} offen offset:{(f%4)*1024} {STC}")
    return gemm("oproj_kernel", 256, 32, 2, 4, 256, True, 'wo', 1024, 4096*512*2, 4, 32, ids, 262144, epi, 131072)

def gen_red():
    name = "red_kernel"; A = Asm(); E = f"{name}_end"
    A(f"s_cmp_ge_u32 s2, 256"); A(f"s_cbranch_scc1 {E}")
    stamp(A, 0)
    A(f"s_load_dwordx2 s[4:5], s[0:1], {KA['x']}"); A(f"s_load_dwordx2 s[10:11], s[0:1], {KA['ws']}")
    A("v_lshrrev_b32 v1, 6, v0"); A("s_nop 0"); A("v_readfirstlane_b32 s16, v1"); A("v_and_b32 v1, 63, v0")
    A("s_lshr_b32 s17, s2, 2"); A("s_and_b32 s14, s2, 3")
    A("v_lshrrev_b32 v4, 4, v1"); A("v_bfe_u32 v5, v1, 3, 1"); A("v_and_b32 v6, 7, v1")
    A("v_lshlrev_b32 v2, 10, v4"); A("v_lshlrev_b32 v7, 9, v5"); A("v_add_u32 v2, v2, v7"); A("v_lshlrev_b32 v7, 4, v6"); A("v_add_u32 v2, v2, v7")
    A("v_lshlrev_b32 v8, 4, v4"); A("v_lshlrev_b32 v7, 2, v5"); A("v_add_u32 v8, v8, v7")
    A("v_lshlrev_b32 v3, 1, v8"); A("v_lshlrev_b32 v7, 10, v6"); A("v_add_u32 v3, v3, v7"); A("v_lshlrev_b32 v9, 2, v8")
    A("s_lshl_b32 s15, s16, 12"); A("s_lshl_b32 s18, s14, 7"); A("s_add_u32 s15, s15, s18")
    A("s_waitcnt lgkmcnt(0)")
    srd(A, 20, 4, 2048*512*2); srd(A, 32, 10, WS_SIZE)
    A("s_lshl_b32 s18, s17, 18"); A("s_add_u32 s18, s18, s15"); A(f"s_add_u32 s18, s18, {WS_PART}")
    P = 32
    for ks in range(8):
        A(f"buffer_load_dwordx4 v[{P+4*ks}:{P+4*ks+3}], v2, s[32:35], s18 offen")
        if ks < 7: A("s_add_u32 s18, s18, 32768")
    A("s_lshl_b32 s19, s17, 15"); A("s_lshl_b32 s18, s14, 13"); A("s_add_u32 s19, s19, s18"); A("s_lshl_b32 s18, s16, 7"); A("s_add_u32 s19, s19, s18")
    A("buffer_load_dwordx2 v[24:25], v3, s[20:23], s19 offen"); A("buffer_load_dwordx2 v[26:27], v3, s[20:23], s19 offen offset:16")
    A("s_lshl_b32 s18, s16, 8")
    for (reg, m) in ((64, 2), (72, 3), (80, 4)):
        A(f"s_add_u32 s19, s18, {WS_MOD + m*2048}")
        A(f"buffer_load_dwordx4 v[{reg}:{reg+3}], v9, s[32:35], s19 offen"); A(f"buffer_load_dwordx4 v[{reg+4}:{reg+7}], v9, s[32:35], s19 offen offset:32")
    A("v_lshlrev_b32 v12, 5, v6"); A("s_lshl_b32 s18, s16, 2"); A("v_add_u32 v13, s18, v12")
    S_ = 96
    for ks in range(8):
        A(f"s_waitcnt vmcnt({7 - ks + 8})")
        if ks == 0: unpack_bf16(A, P, S_, 4)
        else:
            unpack_bf16(A, P + 4*ks, S_ + 8, 4)
            for i in range(8): A(f"v_add_f32 v{S_+i}, v{S_+i}, v{S_+8+i}")
    round_bf16_inplace(A, S_, 8, 10)
    A("s_waitcnt vmcnt(0)")
    unpack_bf16(A, 24, 40, 4)
    for i in range(8): A(f"v_mul_f32 v{S_+i}, v{S_+i}, v{64+i}")
    round_bf16_inplace(A, S_, 8, 10)
    for i in range(8): A(f"v_add_f32 v{40+i}, v{40+i}, v{S_+i}")
    for i in range(4): A(f"v_cvt_pk_bf16_f32 v{24+i}, v{40+2*i}, v{41+2*i}")
    A("s_lshl_b32 s19, s17, 15"); A("s_add_u32 s19, s19, s15"); A(f"s_add_u32 s18, s19, {WS_X1}")
    A("buffer_store_dwordx4 v[24:27], v2, s[32:35], s18 offen")
    unpack_bf16(A, 24, 40, 4)
    for i in range(8): A(f"v_add_f32 v{80+i}, 1.0, v{80+i}")
    def rowsum(t, off):
        A("s_nop 1"); A(f"v_add_f32_dpp v{t}, v{t}, v{t} row_ror:8 row_mask:0xf bank_mask:0xf")
        A(f"v_mov_b32 v11, v{t}"); A("s_nop 1"); A(f"v_permlane16_swap_b32 v{t}, v11"); A("s_nop 1"); A(f"v_add_f32 v{t}, v{t}, v11")
        A(f"v_mov_b32 v11, v{t}"); A("s_nop 1"); A(f"v_permlane32_swap_b32 v{t}, v11"); A("s_nop 1"); A(f"v_add_f32 v{t}, v{t}, v11")
        A(f"ds_write_b32 v13, v{t} offset:{off}")
        A("s_waitcnt lgkmcnt(0)"); A("s_barrier")
        A(f"ds_read_b128 v[56:59], v12 offset:{off}"); A(f"ds_read_b128 v[60:63], v12 offset:{off+16}")
        A("s_waitcnt lgkmcnt(0)")
        for i in range(4): A(f"v_add_f32 v{56+i}, v{56+i}, v{60+i}")
        A("v_add_f32 v56, v56, v57"); A("v_add_f32 v58, v58, v59"); A(f"v_add_f32 v{t}, v56, v58")
    t = 10
    A(f"v_add_f32 v{t}, v40, v41")
    for i in range(2, 8): A(f"v_add_f32 v{t}, v{t}, v{40+i}")
    rowsum(t, 0)
    A(f"v_mul_f32 v{t}, {hx(-1.0/512)}, v{t}")
    for i in range(8): A(f"v_add_f32 v{40+i}, v{40+i}, v{t}")
    A(f"v_mul_f32 v{t}, v40, v40")
    for i in range(1, 8): A(f"v_fmac_f32 v{t}, v{40+i}, v{40+i}")
    rowsum(t, 256)
    A(f"v_mul_f32 v{t}, {hx(1.0/512)}, v{t}"); A(f"v_add_f32 v{t}, {hx(1e-5)}, v{t}"); A(f"v_rsq_f32 v{t}, v{t}"); A("s_nop 0")
    for i in range(8): A(f"v_mul_f32 v{40+i}, v{40+i}, v{t}")
    for i in range(8): A(f"v_fma_f32 v{40+i}, v{40+i}, v{80+i}, v{72+i}")
    for i in range(4): A(f"v_cvt_pk_bf16_f32 v{28+i}, v{40+2*i}, v{41+2*i}")
    A(f"s_add_u32 s18, s19, {WS_H2}")
    A("buffer_store_dwordx4 v[28:31], v2, s[32:35], s18 offen")
    if PROF: A("s_waitcnt vmcnt(0)")
    stamp(A, 1)
    stamp_out(A, 2, 37, 16, 0, 0)
    A.label(E); A("s_endpgm")
    return kernel_head(name) + A.text() + kernel_desc(name, 128), f"; @launch kernel={name} grid=(256,1,1) block=(512,1,1) lds=1024\n"

def gen_mlp1():
    def ids(A):
        A("s_and_b32 s14, s2, 15"); A("s_lshr_b32 s17, s2, 4")
        A("s_lshl_b32 s20, s17, 8")
        A("s_lshl_b32 s22, s14, 2"); A("s_add_u32 s22, s22, s16")
        A("s_lshl_b32 s21, s22, 15"); A(f"s_add_u32 s21, s21, {WS_H2}")
    def epi(A, ACC, vm):
        A(f"s_mul_i32 s18, s22, {112*1024}"); A("s_lshl_b32 s19, s17, 13"); A("s_add_u32 s18, s18, s19"); A(f"s_add_u32 s18, s18, {WS_HID}"); A("s_add_u32 s19, s18, 4096")
        for nb in range(4):
            a0 = ACC + 16*nb
            for i in range(16): A(f"v_mul_f32 v{32+i}, {hx(-LOG2E)}, v{a0+i}")
            for i in range(16): A(f"v_exp_f32 v{32+i}, v{32+i}")
            for i in range(16): A(f"v_add_f32 v{32+i}, 1.0, v{32+i}")
            for i in range(16): A(f"v_rcp_f32 v{32+i}, v{32+i}")
            for i in range(16): A(f"v_mul_f32 v{a0+i}, v{a0+i}, v{32+i}")
            for i in range(8): A(f"v_cvt_pk_bf16_f32 v{a0+i}, v{a0+2*i}, v{a0+2*i+1}")
            for t in range(2):
                f = 2*nb + t
                A(f"buffer_store_dwordx4 v[{a0+4*t}:{a0+4*t+3}], v2, s[32:35], s{18 + f//4} offen offset:{(f%4)*1024} {STC}")
    return gemm("mlp1_kernel", 224, 32, 1, 4, 256, True, 'w1', 3584, 512*1792*2, 4, 32, ids, 0, epi, 131072)

def gen_mlp2(F=None, part=None):
    def ids(A):
        A("s_and_b32 s14, s2, 15"); A("s_lshr_b32 s17, s2, 4")
        A("s_lshl_b32 s20, s17, 6")
        A("s_lshl_b32 s22, s14, 2"); A("s_add_u32 s22, s22, s16")
        A(f"s_mul_i32 s21, s22, {112*1024}"); A(f"s_add_u32 s21, s21, {WS_HID}")
    def pre(A):
        A("v_lshrrev_b32 v5, 5, v1")
        A("s_lshl_b32 s19, s22, 15"); A("s_lshl_b32 s23, s17, 11"); A("s_add_u32 s19, s19, s23"); A(f"s_add_u32 s19, s19, {WS_X1}")
        for t in range(2): A(f"buffer_load_dwordx4 v[{96+4*t}:{99+4*t}], v2, s[32:35], s19 offen offset:{1024*t}{' sc1' if F is not None else ''}")
        A("v_lshlrev_b32 v7, 4, v5"); A("s_lshl_b32 s19, s17, 7"); A(f"s_add_u32 s19, s19, {WS_MOD + 5*2048}")
        for a_ in range(4): A(f"buffer_load_dwordx4 v[{104+4*a_}:{107+4*a_}], v7, s[32:35], s19 offen offset:{32*a_}")
    def epi(A, ACC, vm):
        A("v_and_b32 v4, 31, v1"); A("v_lshrrev_b32 v5, 5, v1")
        A("v_lshlrev_b32 v6, 10, v4"); A("v_lshlrev_b32 v7, 3, v5"); A("v_add_u32 v6, v6, v7")
        A("s_lshl_b32 s18, s22, 15"); A("s_lshl_b32 s19, s17, 6"); A("s_add_u32 s18, s18, s19")
        round_bf16_inplace(A, ACC, 16, 10)
        for i in range(16): A(f"v_mul_f32 v{ACC+i}, v{ACC+i}, v{104+i}")
        round_bf16_inplace(A, ACC, 16, 10)
        unpack_bf16(A, 96, 64, 8)
        for i in range(16): A(f"v_add_f32 v{ACC+i}, v{ACC+i}, v{64+i}")
        for i in range(8): A(f"v_cvt_pk_bf16_f32 v{32+i}, v{ACC+2*i}, v{ACC+2*i+1}")
        for a_ in range(4): A(f"buffer_store_dwordx2 v[{32+2*a_}:{33+2*a_}], v6, s[36:39], s18 offen offset:{16*a_}")
    return gemm("mlp2_kernel", 256, 112, 1, 1, 64, True, 'w2', 1024, 1792*512*2, 7, 32, ids, 0, epi, 114688, WD=6, F=F, part=part, pre=pre)

def gen_tail():
    if os.environ.get("FUSE", "1") == "1":
        import gen_fused
        return [gen_fused.gen_fused()]
    return [gen_oproj2(), gen_red(), gen_mlp12(), gen_mlp2()]
```

```python
import os
from asmlib import *
KA = dict(x=0, ckv=8, wq=16, wuk=24, wuv=32, wo=40, bx=48, w1=56, w2=64, c=72, wmod=80, out=88, dbg=96, ws=104)
WS_MOD  = 0x0
WS_H1   = 0x100000
WS_CF   = 0x400000
WS_KV   = 0x1000000
WS_CTX  = 0x3000000
WS_PART = 0x4000000
WS_X1   = 0x5000000
WS_H2   = 0x5200000
WS_HID  = 0x5400000
WS_SIZE = 0x10000000
WSB = int(os.environ.get('WSB', '0'), 0)
WS_MOD += WSB; WS_H1 += WSB; WS_CF += WSB; WS_KV += WSB; WS_CTX += WSB; WS_PART += WSB; WS_X1 += WSB; WS_H2 += WSB; WS_HID += WSB
WS_FLAG = 0x300000 + WSB
LOG2E = 1.4426950408889634

import struct
def f2u(x): return struct.unpack("<I", struct.pack("<f", x))[0]
def hx(x): return "0x%08x" % f2u(x)

def wave_sum(A, vr, sdst):
    for sh in (1, 2, 4, 8):
        A("s_nop 1")
        A(f"v_add_f32_dpp v{vr}, v{vr}, v{vr} row_shr:{sh} row_mask:0xf bank_mask:0xf bound_ctrl:0")
    A("s_nop 1")
    A(f"v_add_f32_dpp v{vr}, v{vr}, v{vr} row_bcast:15 row_mask:0xa bank_mask:0xf")
    A("s_nop 1")
    A(f"v_add_f32_dpp v{vr}, v{vr}, v{vr} row_bcast:31 row_mask:0xc bank_mask:0xf")
    A("s_nop 1")
    A(f"v_readlane_b32 s{sdst}, v{vr}, 63")
    A("s_nop 3")

def unpack_bf16(A, src, dst, n):
    for i in range(n):
        A(f"v_lshlrev_b32 v{dst+2*i}, 16, v{src+i}")
        A(f"v_and_b32 v{dst+2*i+1}, 0xffff0000, v{src+i}")

def layernorm_row(A, xf, n, gam, bet, st, tmp):
    N = 64 * n
    A(f"v_add_f32 v{tmp}, v{xf}, v{xf+1}")
    for i in range(2, n): A(f"v_add_f32 v{tmp}, v{tmp}, v{xf+i}")
    wave_sum(A, tmp, st)
    A(f"v_mov_b32 v{tmp}, {hx(-1.0/N)}")
    A(f"v_mul_f32 v{tmp}, s{st}, v{tmp}")
    for i in range(n): A(f"v_add_f32 v{xf+i}, v{xf+i}, v{tmp}")
    A(f"v_mul_f32 v{tmp}, v{xf}, v{xf}")
    for i in range(1, n): A(f"v_fmac_f32 v{tmp}, v{xf+i}, v{xf+i}")
    wave_sum(A, tmp, st)
    A(f"v_mov_b32 v{tmp}, {hx(1.0/N)}")
    A(f"v_mul_f32 v{tmp}, s{st}, v{tmp}")
    A(f"v_add_f32 v{tmp}, {hx(1e-5)}, v{tmp}")
    A(f"v_rsq_f32 v{tmp}, v{tmp}")
    A("s_nop 0")
    for i in range(n): A(f"v_mul_f32 v{xf+i}, v{xf+i}, v{tmp}")
    for i in range(n): A(f"v_fma_f32 v{xf+i}, v{xf+i}, v{gam+i}, v{bet+i}")

def round_bf16_inplace(A, r, n, tmp):
    for i in range(0, n, 2):
        A(f"v_cvt_pk_bf16_f32 v{tmp}, v{r+i}, v{r+i+1}")
        A(f"v_lshlrev_b32 v{r+i}, 16, v{tmp}")
        A(f"v_and_b32 v{r+i+1}, 0xffff0000, v{tmp}")

import os
PROF = os.environ.get("PROF", "") != ""
RT_ON = [False]
def stamp_dump(A, n, wave_sreg, wave):
    if not PROF: return
    L = A.new("pa")
    A("s_waitcnt lgkmcnt(0)")
    A(f"s_cmp_lg_u32 s{wave_sreg}, {wave}"); A(f"s_cbranch_scc1 {L}")
    A(f"s_load_dwordx2 s[76:77], s[0:1], {KA['ws']}"); A("s_waitcnt lgkmcnt(0)")
    A("s_and_b32 s77, s77, 0xffff"); A(f"s_mov_b32 s78, {WS_SIZE}"); A("s_mov_b32 s79, 0x20000")
    A(f"s_lshl_b32 s75, s2, 5"); A(f"s_add_u32 s75, s75, {WS_PROF + 4*8192}")
    A("v_mov_b32 v1, 0")
    for i in range(n): A(f"v_mov_b32 v{4+i}, s{80+2*i}")
    A("buffer_store_dwordx4 v[4:7], v1, s[76:79], s75 offen"); A("buffer_store_dwordx4 v[8:11], v1, s[76:79], s75 offen offset:16")
    A("s_waitcnt vmcnt(0)")
    A.label(L)
def stamp(A, i):
    if os.environ.get("DBGO") and RT_ON[0]:
        RT_ON.append(i)
        if RT_ON.count(i) > 1 or (i < 100 and len(RT_ON) > 2 and 2 in RT_ON[1:-1]): return
        if i >= 100: i -= 100
    if PROF:
        A(f"{'s_memrealtime' if os.environ.get('RT') == '1' and RT_ON[0] else 's_memtime'} s[{80+2*i}:{81+2*i}]")
        if i == 0: A("s_memrealtime s[96:97]")
def stamp_out(A, n, wg, wave_sreg, wave, base=0):
    if not PROF: return
    L = A.new("po")
    A("s_waitcnt lgkmcnt(0)")
    A(f"s_cmp_lg_u32 s2, {wg}"); A(f"s_cbranch_scc1 {L}")
    A(f"s_cmp_lg_u32 s{wave_sreg}, {wave}"); A(f"s_cbranch_scc1 {L}")
    A(f"s_load_dwordx2 s[76:77], s[0:1], {KA['dbg']}"); A("s_waitcnt lgkmcnt(0)")
    A("s_and_b32 s77, s77, 0xffff"); A("s_mov_b32 s78, 256"); A("s_mov_b32 s79, 0x20000")
    A("v_mov_b32 v1, 0")
    for i in range(1, n):
        A(f"s_sub_u32 s75, s{80+2*i}, s80"); A("v_mov_b32 v0, s75")
        A(f"buffer_store_dword v0, v1, s[76:79], 0 offen offset:{4*(base+i)}")
    A("s_memrealtime s[98:99]"); A("s_waitcnt lgkmcnt(0)")
    A("s_sub_u32 s75, s98, s96"); A("v_mov_b32 v0, s75")
    A(f"buffer_store_dword v0, v1, s[76:79], 0 offen offset:{4*base}")
    A("s_waitcnt vmcnt(0)")
    A.label(L)

WS_PROF = 0xF000000
def stamp_all(A, kidx, wave_sreg, wave):
    if not PROF: return
    L = A.new("pa")
    A(f"s_cmp_lg_u32 s{wave_sreg}, {wave}"); A(f"s_cbranch_scc1 {L}")
    A(f"s_load_dwordx2 s[76:77], s[0:1], {KA['ws']}"); A("s_memrealtime s[98:99]"); A("s_memtime s[94:95]"); A("s_waitcnt lgkmcnt(0)")
    A("s_and_b32 s77, s77, 0xffff"); A(f"s_mov_b32 s78, {WS_SIZE}"); A("s_mov_b32 s79, 0x20000")
    A(f"s_lshl_b32 s75, s2, 4"); A(f"s_add_u32 s75, s75, {WS_PROF + kidx*8192}")
    A("v_mov_b32 v1, 0")
    A("v_mov_b32 v4, s96"); A("v_mov_b32 v5, s98"); A("s_sub_u32 s74, s94, s80"); A("v_mov_b32 v6, s74"); A("s_getreg_b32 s74, hwreg(HW_REG_XCC_ID)"); A("v_mov_b32 v7, s74")
    A("buffer_store_dwordx4 v[4:7], v1, s[76:79], s75 offen")
    A("s_waitcnt vmcnt(0)")
    A.label(L)

class VM:
    def __init__(self, A): self.A = A; self.n = 0; self.tag = {}
    def issue(self, ins, tag=None):
        self.A(ins); self.n += 1
        if tag is not None: self.tag[tag] = self.n
    def need(self, *tags):
        last = max(self.tag[t] for t in tags)
        return min(63, self.n - last)
    def wait(self, *tags, extra=""):
        c = self.need(*tags)
        if getattr(self, "done", 0) >= max(self.tag[t] for t in tags) and not extra: return
        self.done = max(getattr(self, "done", 0), self.n - c)
        self.A(f"s_waitcnt vmcnt({c}) {extra}".strip())


def code_pf(A, start, end, voff, nth_log2, n, vt, st):
    if os.environ.get("CPF", "1") != "1": return
    L = A.new("pc")
    A(f"s_getpc_b64 s[{st}:{st+1}]")
    A.label(L)
    A(f"s_add_u32 s{st}, s{st}, {start}-{L}"); A(f"s_addc_u32 s{st+1}, s{st+1}, 0")
    A(f"s_mov_b32 s{st+2}, {end}-{start}-4")
    for i in range(n):
        A(f"v_lshlrev_b32 v{vt+2}, 6, v{voff}")
        if i: A(f"v_add_u32 v{vt+2}, {i << (nth_log2 + 6)}, v{vt+2}")
        A(f"v_min_u32 v{vt+2}, s{st+2}, v{vt+2}"); A(f"v_and_b32 v{vt+2}, -4, v{vt+2}")
        A(f"v_mov_b32 v{vt+1}, s{st+1}"); A(f"v_add_co_u32 v{vt}, vcc, s{st}, v{vt+2}"); A(f"v_addc_co_u32 v{vt+1}, vcc, 0, v{vt+1}, vcc")
        A(f"global_load_dword v{vt+3}, v[{vt}:{vt+1}], off")
```

```python
import os
from asmlib import *
KA = dict(x=0, ckv=8, wq=16, wuk=24, wuv=32, wo=40, bx=48, w1=56, w2=64, c=72, wmod=80, out=88, dbg=96, ws=104)
WS_MOD  = 0x0
WS_H1   = 0x100000
WS_CF   = 0x400000
WS_KV   = 0x1000000
WS_CTX  = 0x3000000
WS_PART = 0x4000000
WS_X1   = 0x5000000
WS_H2   = 0x5200000
WS_HID  = 0x5400000
WS_SIZE = 0x10000000
WSB = int(os.environ.get('WSB', '0'), 0)
WS_MOD += WSB; WS_H1 += WSB; WS_CF += WSB; WS_KV += WSB; WS_CTX += WSB; WS_PART += WSB; WS_X1 += WSB; WS_H2 += WSB; WS_HID += WSB
WS_FLAG = 0x300000 + WSB
LOG2E = 1.4426950408889634

import struct
def f2u(x): return struct.unpack("<I", struct.pack("<f", x))[0]
def hx(x): return "0x%08x" % f2u(x)

def wave_sum(A, vr, sdst):
    for sh in (1, 2, 4, 8):
        A("s_nop 1")
        A(f"v_add_f32_dpp v{vr}, v{vr}, v{vr} row_shr:{sh} row_mask:0xf bank_mask:0xf bound_ctrl:0")
    A("s_nop 1")
    A(f"v_add_f32_dpp v{vr}, v{vr}, v{vr} row_bcast:15 row_mask:0xa bank_mask:0xf")
    A("s_nop 1")
    A(f"v_add_f32_dpp v{vr}, v{vr}, v{vr} row_bcast:31 row_mask:0xc bank_mask:0xf")
    A("s_nop 1")
    A(f"v_readlane_b32 s{sdst}, v{vr}, 63")
    A("s_nop 3")

def unpack_bf16(A, src, dst, n):
    for i in range(n):
        A(f"v_lshlrev_b32 v{dst+2*i}, 16, v{src+i}")
        A(f"v_and_b32 v{dst+2*i+1}, 0xffff0000, v{src+i}")

def layernorm_row(A, xf, n, gam, bet, st, tmp):
    N = 64 * n
    A(f"v_add_f32 v{tmp}, v{xf}, v{xf+1}")
    for i in range(2, n): A(f"v_add_f32 v{tmp}, v{tmp}, v{xf+i}")
    wave_sum(A, tmp, st)
    A(f"v_mov_b32 v{tmp}, {hx(-1.0/N)}")
    A(f"v_mul_f32 v{tmp}, s{st}, v{tmp}")
    for i in range(n): A(f"v_add_f32 v{xf+i}, v{xf+i}, v{tmp}")
    A(f"v_mul_f32 v{tmp}, v{xf}, v{xf}")
    for i in range(1, n): A(f"v_fmac_f32 v{tmp}, v{xf+i}, v{xf+i}")
    wave_sum(A, tmp, st)
    A(f"v_mov_b32 v{tmp}, {hx(1.0/N)}")
    A(f"v_mul_f32 v{tmp}, s{st}, v{tmp}")
    A(f"v_add_f32 v{tmp}, {hx(1e-5)}, v{tmp}")
    A(f"v_rsq_f32 v{tmp}, v{tmp}")
    A("s_nop 0")
    for i in range(n): A(f"v_mul_f32 v{xf+i}, v{xf+i}, v{tmp}")
    for i in range(n): A(f"v_fma_f32 v{xf+i}, v{xf+i}, v{gam+i}, v{bet+i}")

def round_bf16_inplace(A, r, n, tmp):
    for i in range(0, n, 2):
        A(f"v_cvt_pk_bf16_f32 v{tmp}, v{r+i}, v{r+i+1}")
        A(f"v_lshlrev_b32 v{r+i}, 16, v{tmp}")
        A(f"v_and_b32 v{r+i+1}, 0xffff0000, v{tmp}")

import os
PROF = os.environ.get("PROF", "") != ""
RT_ON = [False]
def stamp_dump(A, n, wave_sreg, wave):
    if not PROF: return
    L = A.new("pa")
    A("s_waitcnt lgkmcnt(0)")
    A(f"s_cmp_lg_u32 s{wave_sreg}, {wave}"); A(f"s_cbranch_scc1 {L}")
    A(f"s_load_dwordx2 s[76:77], s[0:1], {KA['ws']}"); A("s_waitcnt lgkmcnt(0)")
    A("s_and_b32 s77, s77, 0xffff"); A(f"s_mov_b32 s78, {WS_SIZE}"); A("s_mov_b32 s79, 0x20000")
    A(f"s_lshl_b32 s75, s2, 5"); A(f"s_add_u32 s75, s75, {WS_PROF + 4*8192}")
    A("v_mov_b32 v1, 0")
    for i in range(n): A(f"v_mov_b32 v{4+i}, s{80+2*i}")
    A("buffer_store_dwordx4 v[4:7], v1, s[76:79], s75 offen"); A("buffer_store_dwordx4 v[8:11], v1, s[76:79], s75 offen offset:16")
    A("s_waitcnt vmcnt(0)")
    A.label(L)
def stamp(A, i):
    if os.environ.get("DBGO") and RT_ON[0]:
        RT_ON.append(i)
        if RT_ON.count(i) > 1 or (i < 100 and len(RT_ON) > 2 and 2 in RT_ON[1:-1]): return
        if i >= 100: i -= 100
    if PROF:
        A(f"{'s_memrealtime' if os.environ.get('RT') == '1' and RT_ON[0] else 's_memtime'} s[{80+2*i}:{81+2*i}]")
        if i == 0: A("s_memrealtime s[96:97]")
def stamp_out(A, n, wg, wave_sreg, wave, base=0):
    if not PROF: return
    L = A.new("po")
    A("s_waitcnt lgkmcnt(0)")
    A(f"s_cmp_lg_u32 s2, {wg}"); A(f"s_cbranch_scc1 {L}")
    A(f"s_cmp_lg_u32 s{wave_sreg}, {wave}"); A(f"s_cbranch_scc1 {L}")
    A(f"s_load_dwordx2 s[76:77], s[0:1], {KA['dbg']}"); A("s_waitcnt lgkmcnt(0)")
    A("s_and_b32 s77, s77, 0xffff"); A("s_mov_b32 s78, 256"); A("s_mov_b32 s79, 0x20000")
    A("v_mov_b32 v1, 0")
    for i in range(1, n):
        A(f"s_sub_u32 s75, s{80+2*i}, s80"); A("v_mov_b32 v0, s75")
        A(f"buffer_store_dword v0, v1, s[76:79], 0 offen offset:{4*(base+i)}")
    A("s_memrealtime s[98:99]"); A("s_waitcnt lgkmcnt(0)")
    A("s_sub_u32 s75, s98, s96"); A("v_mov_b32 v0, s75")
    A(f"buffer_store_dword v0, v1, s[76:79], 0 offen offset:{4*base}")
    A("s_waitcnt vmcnt(0)")
    A.label(L)

WS_PROF = 0xF000000
def stamp_all(A, kidx, wave_sreg, wave):
    if not PROF: return
    L = A.new("pa")
    A(f"s_cmp_lg_u32 s{wave_sreg}, {wave}"); A(f"s_cbranch_scc1 {L}")
    A(f"s_load_dwordx2 s[76:77], s[0:1], {KA['ws']}"); A("s_memrealtime s[98:99]"); A("s_memtime s[94:95]"); A("s_waitcnt lgkmcnt(0)")
    A("s_and_b32 s77, s77, 0xffff"); A(f"s_mov_b32 s78, {WS_SIZE}"); A("s_mov_b32 s79, 0x20000")
    A(f"s_lshl_b32 s75, s2, 4"); A(f"s_add_u32 s75, s75, {WS_PROF + kidx*8192}")
    A("v_mov_b32 v1, 0")
    A("v_mov_b32 v4, s96"); A("v_mov_b32 v5, s98"); A("s_sub_u32 s74, s94, s80"); A("v_mov_b32 v6, s74"); A("s_getreg_b32 s74, hwreg(HW_REG_XCC_ID)"); A("v_mov_b32 v7, s74")
    A("buffer_store_dwordx4 v[4:7], v1, s[76:79], s75 offen")
    A("s_waitcnt vmcnt(0)")
    A.label(L)

class VM:
    def __init__(self, A): self.A = A; self.n = 0; self.tag = {}
    def issue(self, ins, tag=None):
        self.A(ins); self.n += 1
        if tag is not None: self.tag[tag] = self.n
    def need(self, *tags):
        last = max(self.tag[t] for t in tags)
        return min(63, self.n - last)
    def wait(self, *tags, extra=""):
        c = self.need(*tags)
        if getattr(self, "done", 0) >= max(self.tag[t] for t in tags) and not extra: return
        self.done = max(getattr(self, "done", 0), self.n - c)
        self.A(f"s_waitcnt vmcnt({c}) {extra}".strip())


def code_pf(A, start, end, voff, nth_log2, n, vt, st, back=None):
    if os.environ.get("CPF", "1") != "1": return
    L = A.new("pc")
    A(f"s_getpc_b64 s[{st}:{st+1}]")
    A.label(L)
    if back is None: back = (start == "mod_kernel" and voff == 0 and n == 1)
    if back: A(f"s_sub_u32 s{st}, s{st}, {L}-{start}"); A(f"s_subb_u32 s{st+1}, s{st+1}, 0")
    else: A(f"s_add_u32 s{st}, s{st}, {start}-{L}"); A(f"s_addc_u32 s{st+1}, s{st+1}, 0")
    A(f"s_mov_b32 s{st+2}, {end}-{start}-4")
    for i in range(n):
        A(f"v_lshlrev_b32 v{vt+2}, 6, v{voff}")
        if i: A(f"v_add_u32 v{vt+2}, {i << (nth_log2 + 6)}, v{vt+2}")
        A(f"v_min_u32 v{vt+2}, s{st+2}, v{vt+2}"); A(f"v_and_b32 v{vt+2}, -4, v{vt+2}")
        A(f"v_mov_b32 v{vt+1}, s{st+1}"); A(f"v_add_co_u32 v{vt}, vcc, s{st}, v{vt+2}"); A(f"v_addc_co_u32 v{vt+1}, vcc, 0, v{vt+1}, vcc")
        A(f"global_load_dword v{vt+3}, v[{vt}:{vt+1}], off")
```

```python
from gen_common import *
def gen_mod(name="mod_kernel"):
    A = Asm()
    PFM = os.environ.get("PFM", "1") == "1"
    NW = 256 if PFM else 176
    A(f"s_cmp_ge_u32 s2, {NW}"); A(f"s_cbranch_scc1 {name}_end")
    if os.environ.get("SPF", "0") == "1": code_pf(A, "mod_kernel", "mod_kernel_end", 0, 8, 1, 124, 70)
    if PFM:
        A(f"s_load_dwordx2 s[28:29], s[0:1], {KA['wuk']}"); A(f"s_load_dwordx2 s[30:31], s[0:1], {KA['wuv']}")
        A("v_lshrrev_b32 v120, 6, v0"); A("v_and_b32 v121, 63, v0"); A("v_lshlrev_b32 v121, 4, v121"); A("v_lshlrev_b32 v120, 15, v120"); A("v_add_u32 v120, v120, v121")
        A("s_lshr_b32 s36, s2, 3"); A("s_lshl_b32 s36, s36, 17"); A("s_and_b32 s37, s2, 7"); A("s_lshl_b32 s37, s37, 10"); A("s_add_u32 s36, s36, s37")
        A("s_waitcnt lgkmcnt(0)")
        srd(A, 40, 28, 512*4096*2); srd(A, 44, 30, 512*4096*2)
        def pf():
            A("s_mov_b32 s37, s36")
            for i in range(4):
                A(f"buffer_load_dwordx4 v[{96+0}:{99+0}], v120, s[40:43], s37 offen"); A(f"buffer_load_dwordx4 v[{116}:{119}], v120, s[44:47], s37 offen")
                if i < 3: A("s_add_u32 s37, s37, 8192")
        A(f"s_cmp_ge_u32 s2, 176"); A(f"s_cbranch_scc0 {name}_go")
        pf()
        code_pf(A, "kv_kernel", "kv_kernel_end", 0, 8, 3, 124, 50)
        if os.environ.get("TLB", "0") == "1":
            A(f"s_load_dwordx2 s[20:21], s[0:1], {KA['ws']}"); A(f"s_load_dwordx2 s[24:25], s[0:1], {KA['out']}"); A("s_waitcnt lgkmcnt(0)")
            srd(A, 16, 20, WS_SIZE); srd(A, 52, 24, 2048*512*2)
            sh = int(os.environ.get("TLBS", "16"))
            A(f"v_lshlrev_b32 v122, {sh}, v0")
            n = -(-(0x5000000) // (256 << sh))
            for i in range(n):
                A(f"s_mov_b32 s22, {WS_KV + i * (256 << sh)}"); A(f"buffer_load_dword v123, v122, s[16:19], s22 offen")
            A("v_lshlrev_b32 v122, 13, v0"); A("buffer_load_dword v123, v122, s[52:55], 0 offen")
        A(f"s_cmp_lg_u32 s2, 255"); A(f"s_cbranch_scc1 {name}_end")
        A(f"s_load_dwordx2 s[20:21], s[0:1], {KA['ws']}"); A("s_waitcnt lgkmcnt(0)")
        srd(A, 16, 20, WS_SIZE)
        A("v_lshlrev_b32 v2, 4, v0")
        for i in range(4): A(f"v_mov_b32 v{8+i}, 0")
        A(f"s_mov_b32 s22, {WS_FLAG}"); A("buffer_store_dwordx4 v[8:11], v2, s[16:19], s22 offen")
        A(f"s_mov_b32 s22, {WS_FLAG + 4096}"); A("buffer_store_dwordx4 v[8:11], v2, s[16:19], s22 offen")
        A("s_endpgm")
        A.label(f"{name}_go")
    A(f"s_cmp_ge_u32 s2, 48"); A(f"s_cbranch_scc1 {name}_pack")
    A(f"s_load_dwordx2 s[4:5], s[0:1], {KA['c']}")
    A(f"s_load_dwordx2 s[6:7], s[0:1], {KA['wmod']}")
    A(f"s_load_dwordx2 s[20:21], s[0:1], {KA['ws']}")
    A("s_waitcnt lgkmcnt(0)")
    srd(A, 8, 4, 1024); srd(A, 12, 6, 512*3072*2); srd(A, 16, 20, WS_SIZE)
    A("v_and_b32 v1, 7, v0"); A("v_lshrrev_b32 v2, 3, v0")
    A("v_lshlrev_b32 v3, 4, v1")
    A("s_mov_b32 s3, 6144"); A("v_mul_lo_u32 v4, v2, s3"); A("v_add_u32 v3, v3, v4")
    A("s_lshl_b32 s22, s2, 7")
    for i in range(16):
        A(f"s_add_u32 s23, s22, {32*i*6144}")
        A(f"buffer_load_dwordx4 v[{32+4*i}:{35+4*i}], v3, s[12:15], s23 offen")
    A("v_lshlrev_b32 v5, 2, v0")
    A("buffer_load_dword v6, v5, s[8:11], 0 offen")
    if PFM:
        pf(); A("s_waitcnt vmcnt(8)")
    else: A("s_waitcnt vmcnt(0)")
    unpack_bf16(A, 6, 8, 1)
    for r in (8, 9):
        A(f"v_mul_f32 v10, {hx(-LOG2E)}, v{r}"); A("v_exp_f32 v10, v10"); A("s_nop 0")
        A("v_add_f32 v10, 1.0, v10"); A("v_rcp_f32 v10, v10"); A("s_nop 0")
        A(f"v_mul_f32 v{r}, v{r}, v10")
    round_bf16_inplace(A, 8, 2, 10)
    A("v_lshlrev_b32 v5, 3, v0")
    A("ds_write_b64 v5, v[8:9]")
    A("s_waitcnt lgkmcnt(0)"); A("s_barrier")
    A("v_lshlrev_b32 v5, 2, v2")
    for i in range(16): A(f"ds_read_b32 v{12+i}, v5 offset:{128*i}")
    A("s_waitcnt lgkmcnt(0)")
    for e in range(8): A(f"v_mov_b32 v{100+e}, 0")
    for i in range(16):
        unpack_bf16(A, 32+4*i, 108, 4)
        for e in range(8): A(f"v_fmac_f32 v{100+e}, v{108+e}, v{12+i}")
    A("s_barrier")
    A("v_lshlrev_b32 v5, 5, v0")
    A("v_add_u32 v5, 2048, v5")
    A("ds_write_b128 v5, v[100:103]"); A("ds_write_b128 v5, v[104:107] offset:16")
    A("s_waitcnt lgkmcnt(0)"); A("s_barrier")
    A("v_cmp_gt_u32 vcc, 64, v0"); A("s_and_saveexec_b64 s[24:25], vcc"); A(f"s_cbranch_execz {name}_end")
    A("v_lshlrev_b32 v5, 2, v0")
    for rg in range(32): A(f"ds_read_b32 v{32+rg}, v5 offset:{2048+rg*256}")
    A("s_waitcnt lgkmcnt(0)")
    for rg in range(1, 32): A(f"v_add_f32 v32, v32, v{32+rg}")
    A("v_cvt_pk_bf16_f32 v33, v32, v32"); A("v_lshlrev_b32 v33, 16, v33")
    A("s_lshl_b32 s22, s2, 8"); A(f"s_add_u32 s22, s22, {WS_MOD}")
    A("buffer_store_dword v33, v5, s[16:19], s22 offen")
    A("s_waitcnt vmcnt(0)")
    A("s_endpgm")
    A.label(f"{name}_pack")
    A(f"s_load_dwordx2 s[4:5], s[0:1], {KA['ckv']}")
    A(f"s_load_dwordx2 s[20:21], s[0:1], {KA['ws']}")
    A("v_lshrrev_b32 v1, 6, v0"); A("s_nop 0"); A("v_readfirstlane_b32 s16, v1"); A("v_and_b32 v1, 63, v0")
    A("s_sub_u32 s3, s2, 48"); A("s_lshl_b32 s3, s3, 2"); A("s_add_u32 s3, s3, s16")
    A("s_waitcnt lgkmcnt(0)")
    srd(A, 8, 4, 2048*512*2); srd(A, 16, 20, WS_SIZE)
    A("v_and_b32 v4, 31, v1"); A("v_lshrrev_b32 v5, 5, v1"); A("v_lshlrev_b32 v4, 10, v4"); A("v_lshlrev_b32 v5, 4, v5"); A("v_add_u32 v4, v4, v5")
    A("s_lshr_b32 s22, s3, 3"); A("s_lshl_b32 s22, s22, 15"); A("s_and_b32 s23, s3, 7"); A("s_lshl_b32 s24, s23, 7"); A("s_add_u32 s24, s24, s22")
    for i in range(4): A(f"buffer_load_dwordx4 v[{8+4*i}:{11+4*i}], v4, s[8:11], s24 offen offset:{32*i}")
    A("s_lshl_b32 s23, s23, 12"); A("s_add_u32 s22, s22, s23"); A(f"s_add_u32 s22, s22, {WS_CF}")
    A("v_lshlrev_b32 v2, 4, v1")
    if PFM: pf()
    for i in range(4):
        A(f"s_waitcnt vmcnt({3 + (8 if PFM else 0)})")
        A(f"buffer_store_dwordx4 v[{8+4*i}:{11+4*i}], v2, s[16:19], s22 offen offset:{1024*i}")
    A.label(f"{name}_end"); A("s_endpgm")
    return kernel_head(name) + A.text() + kernel_desc(name, 128), f"; @launch kernel={name} grid=({NW},1,1) block=(256,1,1) lds=12288\n"
```

```python
from gen_common import *
import gen_tail as T
SPIN_MAX = 30000

def sync(A, wflag, pflag, nmem, between=None, poll=True, pre=None):
    L0, L1, L2, L3 = A.new("sy"), A.new("sy"), A.new("sy"), A.new("sy")
    if pre: pre()
    else: A("s_waitcnt vmcnt(0)")
    A("s_barrier")
    A("s_cmp_lg_u32 s16, 0"); A(f"s_cbranch_scc1 {L1}")
    A("v_mov_b32 v3, 1"); A("v_mov_b32 v4, 0"); A("s_mov_b64 exec, 1")
    A(f"buffer_store_dword v3, v4, s[32:35], s{wflag} offen sc1")
    A("s_mov_b64 exec, -1")
    if between:
        A(f"s_branch {L0}")
        A.label(L1)
        between()
        A(f"s_branch {L3}")
        A.label(L0)
    else: A.label(L1)
    if not poll: return
    A("s_cmp_lg_u32 s16, 0"); A(f"s_cbranch_scc1 {L3}")
    A(f"v_min_u32 v4, {nmem-1}, v1"); A("v_lshlrev_b32 v4, 2, v4"); A("s_mov_b32 s46, 0")
    A.label(L2)
    A(f"buffer_load_dword v3, v4, s[32:35], s{pflag} offen sc1")
    A("s_waitcnt vmcnt(0)")
    A("v_cmp_ne_u32 vcc, 1, v3"); A(f"s_cbranch_vccz {L3}")
    A("s_sleep 1"); A("s_add_u32 s46, s46, 1"); A(f"s_cmp_lt_u32 s46, {SPIN_MAX}"); A(f"s_cbranch_scc1 {L2}")
    A.label(L3)
    A("s_waitcnt vmcnt(0)"); A("s_barrier")

def dma3(A, sptr, wbytes, rowB, wstride, ngrp, colshift):
    RP = 1024 // rowB
    srd(A, 24, sptr, wbytes)
    if rowB == 256:
        A("v_lshrrev_b32 v6, 4, v1"); A("v_and_b32 v5, 15, v1"); A("v_lshlrev_b32 v7, 2, v6"); A("v_xor_b32 v5, v5, v7")
    else:
        A("v_lshrrev_b32 v6, 2, v1"); A("v_and_b32 v5, 3, v1")
    A("v_lshlrev_b32 v5, 4, v5"); A(f"s_mov_b32 s18, {wstride}"); A("v_mul_lo_u32 v7, v6, s18"); A("v_add_u32 v10, v7, v5")
    A("s_sub_u32 s18, s16, 1"); A(f"s_mul_i32 s19, s18, {RP*wstride}");
    if rowB == 256: T.m1ids(A, 66, 20)
    else: T.m2ids(A, 66, 20)
    A(f"s_lshl_b32 s20, s20, {colshift}"); A("s_add_u32 s19, s19, s20")
    A("s_lshl_b32 m0, s18, 10")
    n = -(-ngrp // 3)
    for i in range(n):
        A("s_nop 0")
        A("buffer_load_dwordx4 v10, s[24:27], s19 offen lds")
        if i < n - 1: A(f"s_add_u32 s19, s19, {3*RP*wstride}"); A("s_add_u32 m0, m0, 3072")

def red4(A, part):
    P, X, GA, SB, CB, S_, TMP, XF = 32, 96, 104, 120, 136, 152, 168, 176
    if part == 'pre':
        red4_pre(A, X, GA, SB, CB); return
    A("s_lshl_b32 s18, s60, 18"); A("s_add_u32 s18, s18, s15"); A(f"s_add_u32 s18, s18, {WS_PART}")
    for ks in range(NKS):
        A("s_add_u32 s19, s18, 4096")
        A(f"buffer_load_dwordx4 v[{P+8*ks}:{P+8*ks+3}], v14, s[32:35], s18 offen sc1")
        A(f"buffer_load_dwordx4 v[{P+8*ks+4}:{P+8*ks+7}], v14, s[32:35], s19 offen sc1")
        if ks < NKS - 1: A("s_add_u32 s18, s18, 32768")
    nd = 0
    if W1LATE:
        A("s_mov_b32 s64, s15"); A("v_mov_b32 v16, v12"); A("v_mov_b32 v17, v13")
        srd(A, 24, 6, 512*1792*2)
        T.gen_mlp12(F=A, part='wdma'); nd = 32
        A("s_mov_b32 s15, s64"); A("v_mov_b32 v12, v16"); A("v_mov_b32 v13, v17")
    red4_main(A, P, X, GA, SB, CB, S_, TMP, XF, nd)

def red4_pre(A, X, GA, SB, CB):
    A("v_lshrrev_b32 v4, 4, v1"); A("v_bfe_u32 v5, v1, 3, 1"); A("v_and_b32 v6, 7, v1")
    A("v_lshlrev_b32 v14, 10, v4"); A("v_lshlrev_b32 v7, 9, v5"); A("v_add_u32 v14, v14, v7"); A("v_lshlrev_b32 v7, 4, v6"); A("v_add_u32 v14, v14, v7")
    A("v_lshlrev_b32 v8, 4, v4"); A("v_lshlrev_b32 v7, 2, v5"); A("v_add_u32 v8, v8, v7")
    A("v_lshlrev_b32 v15, 1, v8"); A("v_lshlrev_b32 v7, 10, v6"); A("v_add_u32 v15, v15, v7"); A("v_lshlrev_b32 v9, 2, v8")
    A("s_lshl_b32 s15, s16, 13"); A("s_lshl_b32 s18, s61, 7"); A("s_add_u32 s15, s15, s18")
    A("s_lshl_b32 s19, s60, 15"); A("s_lshl_b32 s18, s61, 13"); A("s_add_u32 s19, s19, s18"); A("s_lshl_b32 s18, s16, 8"); A("s_add_u32 s19, s19, s18")
    for u in range(2):
        A(f"buffer_load_dwordx2 v[{X+4*u}:{X+4*u+1}], v15, s[36:39], s19 offen offset:{128*u}"); A(f"buffer_load_dwordx2 v[{X+4*u+2}:{X+4*u+3}], v15, s[36:39], s19 offen offset:{128*u+16}")
    A("s_lshl_b32 s18, s16, 9")
    for (reg, m) in ((GA, 2), (SB, 3), (CB, 4)):
        A(f"s_add_u32 s19, s18, {WS_MOD + m*2048}")
        for u in range(2):
            A(f"buffer_load_dwordx4 v[{reg+8*u}:{reg+8*u+3}], v9, s[32:35], s19 offen offset:{256*u}"); A(f"buffer_load_dwordx4 v[{reg+8*u+4}:{reg+8*u+7}], v9, s[32:35], s19 offen offset:{256*u+32}")
    A("v_lshlrev_b32 v12, 4, v6"); A("s_lshl_b32 s18, s16, 2"); A("v_add_u32 v13, s18, v12")
    A(f"v_add_u32 v12, {LDSR}, v12"); A(f"v_add_u32 v13, {LDSR}, v13")

def red4_main(A, P, X, GA, SB, CB, S_, TMP, XF, nd):
    for ks in range(NKS):
        A(f"s_waitcnt vmcnt({2*(NKS-1) - 2*ks + nd})")
        if ks == 0: unpack_bf16(A, P, S_, 8)
        else:
            for u in range(2):
                unpack_bf16(A, P + 8*ks + 4*u, TMP, 4)
                for i in range(8): A(f"v_add_f32 v{S_+8*u+i}, v{S_+8*u+i}, v{TMP+i}")
    round_bf16_inplace(A, S_, 16, 10)
    unpack_bf16(A, X, XF, 8)
    for i in range(16): A(f"v_mul_f32 v{S_+i}, v{S_+i}, v{GA+i}")
    round_bf16_inplace(A, S_, 16, 10)
    for i in range(16): A(f"v_add_f32 v{XF+i}, v{XF+i}, v{S_+i}")
    for i in range(8): A(f"v_cvt_pk_bf16_f32 v{X+i}, v{XF+2*i}, v{XF+2*i+1}")
    A("s_lshl_b32 s19, s60, 15"); A("s_add_u32 s19, s19, s15"); A(f"s_add_u32 s18, s19, {WS_X1}")
    A(f"buffer_store_dwordx4 v[{X}:{X+3}], v14, s[32:35], s18 offen sc1"); A("s_add_u32 s18, s18, 4096")
    A(f"buffer_store_dwordx4 v[{X+4}:{X+7}], v14, s[32:35], s18 offen sc1")
    unpack_bf16(A, X, XF, 8)
    for i in range(16): A(f"v_add_f32 v{CB+i}, 1.0, v{CB+i}")
    def rowsum(t, off):
        A("s_nop 1"); A(f"v_add_f32_dpp v{t}, v{t}, v{t} row_ror:8 row_mask:0xf bank_mask:0xf")
        A(f"v_mov_b32 v11, v{t}"); A("s_nop 1"); A(f"v_permlane16_swap_b32 v{t}, v11"); A("s_nop 1"); A(f"v_add_f32 v{t}, v{t}, v11")
        A(f"v_mov_b32 v11, v{t}"); A("s_nop 1"); A(f"v_permlane32_swap_b32 v{t}, v11"); A("s_nop 1"); A(f"v_add_f32 v{t}, v{t}, v11")
        A(f"ds_write_b32 v13, v{t} offset:{off}")
        A("s_waitcnt lgkmcnt(0)"); A("s_barrier")
        A(f"ds_read_b128 v[56:59], v12 offset:{off}")
        A("s_waitcnt lgkmcnt(0)")
        A("v_add_f32 v56, v56, v57"); A("v_add_f32 v58, v58, v59"); A(f"v_add_f32 v{t}, v56, v58")
    t = 10
    A(f"v_add_f32 v{t}, v{XF}, v{XF+1}")
    for i in range(2, 16): A(f"v_add_f32 v{t}, v{t}, v{XF+i}")
    rowsum(t, 0)
    A(f"v_mul_f32 v{t}, {hx(-1.0/512)}, v{t}")
    for i in range(16): A(f"v_add_f32 v{XF+i}, v{XF+i}, v{t}")
    A(f"v_mul_f32 v{t}, v{XF}, v{XF}")
    for i in range(1, 16): A(f"v_fmac_f32 v{t}, v{XF+i}, v{XF+i}")
    rowsum(t, 128)
    A(f"v_mul_f32 v{t}, {hx(1.0/512)}, v{t}"); A(f"v_add_f32 v{t}, {hx(1e-5)}, v{t}"); A(f"v_rsq_f32 v{t}, v{t}"); A("s_nop 0")
    for i in range(16): A(f"v_mul_f32 v{XF+i}, v{XF+i}, v{t}")
    for i in range(16): A(f"v_fma_f32 v{XF+i}, v{XF+i}, v{CB+i}, v{SB+i}")
    for i in range(8): A(f"v_cvt_pk_bf16_f32 v{X+i}, v{XF+2*i}, v{XF+2*i+1}")
    A(f"s_add_u32 s18, s19, {WS_H2}")
    A(f"buffer_store_dwordx4 v[{X}:{X+3}], v14, s[32:35], s18 offen sc1"); A("s_add_u32 s18, s18, 4096")
    A(f"buffer_store_dwordx4 v[{X+4}:{X+7}], v14, s[32:35], s18 offen sc1")

NKS = 4
W1LATE = os.environ.get('W1LATE', '0') == '1'
LDSR = 131072

def gen_fused(name="tail_kernel"):
    A = Asm(); E = f"{name}_end"
    RT_ON[0] = True
    A("s_cmp_ge_u32 s2, 256"); A(f"s_cbranch_scc1 {E}")
    if os.environ.get("SPF", "0") == "1" and os.environ.get("SPFA", "1") == "1": code_pf(A, "tail_kernel", "tail_kernel_end", 0, 8, 2, 252, 70, True)
    stamp(A, 0)
    A(f"s_load_dwordx2 s[4:5], s[0:1], {KA['wo']}"); A(f"s_load_dwordx2 s[10:11], s[0:1], {KA['ws']}")
    A(f"s_load_dwordx2 s[6:7], s[0:1], {KA['w1']}"); A(f"s_load_dwordx2 s[8:9], s[0:1], {KA['w2']}")
    A(f"s_load_dwordx2 s[12:13], s[0:1], {KA['out']}"); A(f"s_load_dwordx2 s[56:57], s[0:1], {KA['x']}")
    A("v_lshrrev_b32 v1, 6, v0"); A("s_nop 0"); A("v_readfirstlane_b32 s16, v1"); A("v_and_b32 v1, 63, v0"); A("v_lshlrev_b32 v2, 4, v1")
    A("s_waitcnt lgkmcnt(0)")
    srd(A, 24, 4, 4096*512*2); srd(A, 32, 10, WS_SIZE)
    (T.gen_oproj4 if os.environ.get('OP4') else T.gen_oproj3)(F=A, part=None)
    stamp(A, 2)
    A("s_and_b32 s58, s2, 3"); A("s_lshr_b32 s59, s2, 6"); A("s_lshl_b32 s59, s59, 2"); A("s_add_u32 s58, s58, s59")
    A("s_bfe_u32 s59, s2, 0x10002"); A("s_lshl_b32 s59, s59, 3"); A("s_bfe_u32 s60, s2, 0x30003"); A("s_add_u32 s59, s59, s60")
    A("s_lshl_b32 s60, s59, 2"); A("s_lshr_b32 s61, s58, 2"); A("s_add_u32 s60, s60, s61"); A("s_and_b32 s61, s58, 3")
    A("s_lshl_b32 s63, s59, 7"); A(f"s_add_u32 s63, s63, {WS_FLAG + 5120}"); A("s_lshl_b32 s62, s58, 2"); A("s_add_u32 s62, s62, s63")
    def w1dma():
        L = A.new("w1")
        A("s_cmp_ge_u32 s2, 224"); A(f"s_cbranch_scc1 {L}")
        dma3(A, 6, 512*1792*2, 256, 3584, 128, 8)
        A.label(L)
    def redpre():
        srd(A, 36, 56, 2048*512*2)
        red4(A, 'pre')
        A("s_waitcnt vmcnt(16)")
    sync(A, 62, 63, 16, None if W1LATE else w1dma, True, redpre)
    stamp(A, 3)
    red4(A, 'main')
    stamp(A, 4)
    A("s_lshr_b32 s62, s60, 2"); A("s_lshl_b32 s62, s62, 7"); A("s_and_b32 s63, s60, 3"); A("s_lshl_b32 s63, s63, 4"); A("s_add_u32 s62, s62, s63")
    A("s_lshl_b32 s63, s61, 2"); A("s_add_u32 s62, s62, s63"); A(f"s_add_u32 s62, s62, {WS_FLAG + 1024}")
    T.m1ids(A, 63, 66); A("s_lshl_b32 s63, s63, 7"); A(f"s_add_u32 s63, s63, {WS_FLAG + 1024}")
    def w2dma():
        dma3(A, 8, 1792*512*2, 64, 1024, 112, 6)
    LN3, LP3 = A.new("n3"), A.new("p3")
    A("s_cmp_ge_u32 s2, 224"); A(f"s_cbranch_scc1 {LN3}")
    sync(A, 62, 63, 16)
    stamp(A, 5)
    T.gen_mlp12(F=A, part='main')
    stamp(A, 6)
    T.m2ids(A, 63, 66); A("s_lshl_b32 s63, s63, 7"); A(f"s_add_u32 s63, s63, {WS_FLAG + 3072}")
    T.m1ids(A, 62, 66); A("s_lshl_b32 s62, s62, 7"); A("s_lshl_b32 s66, s66, 2"); A("s_add_u32 s62, s62, s66"); A(f"s_add_u32 s62, s62, {WS_FLAG + 3072}")
    A(f"s_branch {LP3}")
    A.label(LN3)
    sync(A, 62, 63, 16, None, poll=False)
    T.m2ids(A, 63, 66); A("s_lshl_b32 s63, s63, 7"); A(f"s_add_u32 s63, s63, {WS_FLAG + 3072}")
    A("s_add_u32 s62, s63, 124")
    A.label(LP3)
    sync(A, 62, 63, 14, w2dma)
    stamp(A, 7)
    srd(A, 36, 12, 2048*512*2)
    T.gen_mlp2(F=A, part='main')
    if PROF:
        A("s_waitcnt vmcnt(0)"); stamp(A, 1)
    if os.environ.get("RT") == "1": stamp_dump(A, 8, 16, 0)
    else: stamp_out(A, 8, int(os.environ.get("PWG", "37")), 16, 0, 0)
    RT_ON[0] = False
    A.label(E); A("s_endpgm")
    return kernel_head(name) + A.text() + kernel_desc(name, 512, accum=256), f"; @launch kernel={name} grid=(256,1,1) block=(256,1,1) lds={LDSR + 1024}\n"
```

```python
from gen_common import *
STC = os.environ.get("STC_TL", "sc1")

def gemm(name, nwg, S, MR, NB, rowB, dmap, wkey, wstride, wbytes, C, R, ids, act, epi, lds, w_is_A=True, WD=2, F=None, part=None, pre=None, ring=None, passes=1, mid=None):
    fused = F is not None
    A = F if fused else Asm(); E = f"{name}_end"
    LF = " sc1" if (fused and part == 'main') else ""
    if not fused:
        A(f"s_cmp_ge_u32 s2, {nwg}"); A(f"s_cbranch_scc1 {E}")
        stamp(A, 0)
        A(f"s_load_dwordx2 s[4:5], s[0:1], {KA[wkey]}")
        A(f"s_load_dwordx2 s[10:11], s[0:1], {KA['ws']}")
        A(f"s_load_dwordx2 s[12:13], s[0:1], {KA['out']}")
        A("v_lshrrev_b32 v1, 6, v0"); A("s_nop 0"); A("v_readfirstlane_b32 s16, v1"); A("v_and_b32 v1, 63, v0"); A("v_lshlrev_b32 v2, 4, v1")
    ids(A)
    if not fused:
        A("s_waitcnt lgkmcnt(0)")
        srd(A, 24, 4, wbytes); srd(A, 32, 10, WS_SIZE); srd(A, 36, 12, 2048*512*2)
    RP, LP = 1024 // rowB, rowB // 16
    rows_chunk = 16 * S // C; nper = rows_chunk * rowB // 1024 // 4; spc = S // C
    lg = {4: 2, 8: 3, 16: 4}[LP]
    A(f"v_lshrrev_b32 v6, {lg}, v1"); A(f"v_and_b32 v5, {LP-1}, v1")
    if rowB == 256: A("v_lshlrev_b32 v7, 2, v6"); A("v_xor_b32 v5, v5, v7")
    if rowB == 128: A("v_lshlrev_b32 v7, 1, v6"); A("v_and_b32 v7, 4, v7"); A("v_xor_b32 v5, v5, v7")
    A("v_lshlrev_b32 v5, 4, v5")
    A(f"s_mul_i32 s18, s16, {nper*RP}"); A("v_add_u32 v7, s18, v6"); A(f"s_mov_b32 s18, {wstride}"); A("v_mul_lo_u32 v7, v7, s18")
    A("v_add_u32 v10, v7, v5")
    nv = min(4, nper)
    for j in range(1, nv): A(f"v_add_u32 v{10+j}, {j*(RP*wstride-1024)}, v10")
    vm = VM(A)
    def dma(c, j):
        if part == 'main': return
        if j % 4 == 0:
            A(f"s_mul_i32 s18, s16, {nper*1024}"); A(f"s_add_u32 s19, s20, {((c % C)*rows_chunk + j*RP)*wstride + (c // C)*rowB}")
            A(f"s_add_u32 m0, s18, {(c % ring if ring else c)*rows_chunk*rowB + j*1024}"); A("s_nop 0")
        vm.issue(f"buffer_load_dwordx4 v{10+j%4}, s[24:27], s19 offen offset:{1024*(j%4)} lds", ('D', c))
    if part == 'wdma':
        for c in range(C):
            for j in range(nper): dma(c, j)
        return
    AB = 256
    nact = S * MR
    if pre: pre(A)
    def aload(i):
        s_, mr = i // MR, i % MR; slot = i % R
        off = mr * act + s_ * 1024
        A(f"s_add_u32 s47, s21, {off & ~4095}")
        vm.issue(f"buffer_load_dwordx4 a[{4*slot}:{4*slot+3}], v2, s[32:35], s47 offen offset:{off & 4095}{LF}", ('A', i))
    for j in range(nper): dma(0, j)
    npre = min(R, nact)
    for i in range(min(8, npre)): aload(i)
    for j in range(nper): dma(1, j)
    SR = ring * spc if ring else S
    win = 65536 // (16 * rowB); nwin = (SR + win - 1) // win
    A("v_lshrrev_b32 v4, 4, v1"); A("v_bfe_u32 v5, v1, 2, 2"); A("v_and_b32 v6, 3, v1")
    A(f"v_lshrrev_b32 v7, 1, v4"); A(f"v_lshlrev_b32 v7, {2 if dmap else 3}, v7"); A("v_add_u32 v7, v7, v5"); A(f"v_mul_u32_u24 v7, {rowB}, v7")
    A("v_and_b32 v8, 1, v4"); A("v_lshlrev_b32 v8, 1, v8"); A("v_lshrrev_b32 v9, 1, v6"); A("v_add_u32 v8, v8, v9"); A("v_lshlrev_b32 v8, 4, v8")
    A("v_and_b32 v9, 1, v6"); A("v_lshlrev_b32 v9, 3, v9"); A("v_add_u32 v8, v8, v9"); A("v_add_u32 v7, v7, v8")
    if rowB == 128: A("v_lshrrev_b32 v5, 1, v5")
    TA = 16
    for nb in range(NB):
        if rowB == 64: A(f"v_mov_b32 v{TA+nb}, v7")
        else: A(f"v_xor_b32 v8, {nb}, v5"); A("v_lshlrev_b32 v8, 6, v8"); A(f"v_add_u32 v{TA+nb}, v7, v8")
        for wn in range(1, nwin): A(f"v_add_u32 v{TA+wn*NB+nb}, {wn*65536}, v{TA+nb}")
    sec = (8 if dmap else 4) * rowB
    WB = [32 + 4*NB*i for i in range(WD)]; ACC = 128
    lg_n = [0]; lg_tag = {}
    def wreads(s_, nb):
        sr = s_ % SR
        ar = TA + (sr // win) * NB + nb; off = (sr % win) * 16 * rowB; r = WB[s_ % WD] + 4*nb
        A(f"ds_read_b64_tr_b16 v[{r}:{r+1}], v{ar} offset:{off}"); A(f"ds_read_b64_tr_b16 v[{r+2}:{r+3}], v{ar} offset:{off+sec}")
        lg_n[0] += 2; lg_tag[(s_, nb)] = lg_n[0]
    dq = [(c, j) for c in range(2, C * passes) for j in range(nper)]
    if part == 'main': dq = []
    midq = []
    nxt_a = min(8, npre)
    nrd = 2 * NB; cbar = 0
    SV = S * passes
    for s_ in range(SV):
        if s_ == 0:
            if part != 'main': vm.wait(('D', 0)); A("s_barrier"); stamp(A, 1)
            for q in range(WD - 1):
                for nb in range(NB): wreads(q, nb)
        if part != 'main' and (s_ + WD - 1) % spc == 0 and s_ + WD - 1 < SV:
            vm.wait(('D', (s_ + WD - 1) // spc)); A("s_barrier")
            cbar = (s_ + WD - 1) // spc
        if s_ < S: vm.wait(*[('A', s_*MR + mr) for mr in range(MR)])
        if mid and s_ == S + 1: midq = mid(A, ACC)
        if os.environ.get("DBGO") and ring and s_ in (8, 16, 32, 48, 63): stamp(A, {8: 103, 16: 104, 32: 105, 48: 106, 63: 107}[s_])
        k = 0
        for nb in range(NB):
            for mr in range(MR):
                if mr == 0:
                    A(f"s_waitcnt lgkmcnt({min(15, lg_n[0] - lg_tag[(s_, nb)])})")
                slot = ((s_ % S)*MR + mr) % R
                w = f"v[{WB[s_%WD]+4*nb}:{WB[s_%WD]+4*nb+3}]"; x_ = f"a[{4*slot}:{4*slot+3}]"
                d0 = ACC + 16*((s_ // S)*NB*MR + mr*NB + nb); d = f"v[{d0}:{d0+15}]"
                a_, b_ = (w, x_) if w_is_A else (x_, w)
                A(f"v_mfma_f32_32x32x16_bf16 {d}, {a_}, {b_}, {'0' if s_ % S == 0 else d}")
                if mr == MR - 1 and s_ + WD - 1 < SV: wreads(s_ + WD - 1, nb)
                for _ in range(2):
                    if midq:
                        it = midq.pop(0)
                        if it[0] == 's': vm.issue(it[1])
                        else: A(it[1])
                if k == 0 or (MR*NB >= 4 and k == 2):
                    lim = min(nact, max(npre, (s_ - 1) * MR + MR - 1 + R + 1 - 0) if s_ >= 1 else npre)
                    lim = min(nact, (s_ * MR) + R) if s_ >= 1 else min(nact, npre)
                    for _ in range(2 if nxt_a < npre else MR):
                        if nxt_a < lim: aload(nxt_a); nxt_a += 1
                if k == MR*NB - 1 and dq:
                    if ring:
                        for _ in range(2):
                            if dq and (dq[0][0] < ring or dq[0][0] - ring + 2 <= cbar): dma(*dq.pop(0))
                    else:
                        dma(*dq.pop(0))
                        if nper > spc and dq: dma(*dq.pop(0))
                k += 1
    assert nxt_a == nact and not dq, (nxt_a, nact, dq)
    if not fused: stamp(A, 2)
    A("s_nop 7"); A("s_nop 7")
    epi(A, ACC, vm)
    if fused: return
    if PROF: A("s_waitcnt vmcnt(0)")
    stamp(A, 3)
    stamp_out(A, 4, 37, 16, 0, 0)
    A.label(E); A("s_endpgm")
    return kernel_head(name) + A.text() + kernel_desc(name, 512, accum=256), f"; @launch kernel={name} grid=({nwg},1,1) block=(256,1,1) lds={lds}\n"

def gemm2(name, nwg, S, MR, phases, wkey, wstride, wbytes, C, ids, act, epi_addr, epi_block, lds, D=5, prof_wg=37, F=None, part=None):
    NB = 4; rowB = 256
    fused = F is not None
    A = F if fused else Asm(); E = f"{name}_end"
    LF = " sc1" if (fused and part == 'main') else ""
    if not fused:
        A(f"s_cmp_ge_u32 s2, {nwg}"); A(f"s_cbranch_scc1 {E}")
        stamp(A, 0)
        A(f"s_load_dwordx2 s[4:5], s[0:1], {KA[wkey]}")
        A(f"s_load_dwordx2 s[10:11], s[0:1], {KA['ws']}")
        A("v_lshrrev_b32 v1, 6, v0"); A("s_nop 0"); A("v_readfirstlane_b32 s16, v1"); A("v_and_b32 v1, 63, v0"); A("v_lshlrev_b32 v2, 4, v1")
    ids(A)
    rows_chunk = 16 * S // C; nper = rows_chunk * rowB // 1024 // 4; spc = S // C
    A("v_lshrrev_b32 v6, 4, v1"); A("v_and_b32 v5, 15, v1"); A("v_lshlrev_b32 v7, 2, v6"); A("v_xor_b32 v5, v5, v7"); A("v_lshlrev_b32 v5, 4, v5")
    A(f"s_mul_i32 s18, s16, {nper*4}"); A("v_add_u32 v7, s18, v6"); A(f"s_mov_b32 s18, {wstride}"); A("v_mul_lo_u32 v7, v7, s18")
    A("v_add_u32 v10, v7, v5")
    for j in range(1, min(4, nper)): A(f"v_add_u32 v{10+j}, {j*(4*wstride-1024)}, v10")
    if not fused:
        A("s_waitcnt lgkmcnt(0)")
        srd(A, 24, 4, wbytes); srd(A, 32, 10, WS_SIZE)
    vm = VM(A)
    def dma(c, j):
        if part == 'main': return
        if j % 4 == 0:
            A(f"s_mul_i32 s18, s16, {nper*1024}"); A(f"s_add_u32 s19, s20, {(c*rows_chunk + j*4)*wstride}")
            A(f"s_add_u32 m0, s18, {c*rows_chunk*rowB + j*1024}"); A("s_nop 0")
        vm.issue(f"buffer_load_dwordx4 v{10+j%4}, s[24:27], s19 offen offset:{1024*(j%4)} lds", ('D', c))
    if part == 'wdma':
        for c in range(C):
            for j in range(nper): dma(c, j)
        return
    nact = S * MR
    def aload(i):
        s_, mr = i // MR, i % MR
        off = mr * act + s_ * 1024
        A(f"s_add_u32 s47, s21, {off & ~4095}")
        vm.issue(f"buffer_load_dwordx4 a[{4*i}:{4*i+3}], v2, s[32:35], s47 offen offset:{off & 4095}{LF}", ('A', i))
    for j in range(nper): dma(0, j)
    for i in range(spc * MR): aload(i)
    for j in range(nper): dma(1, j)
    rest = []
    for c in range(1, C):
        if c >= 2 and part != 'main': rest += [('d', c, j) for j in range(nper)]
        rest += [('a', i) for i in range(c*spc*MR, (c+1)*spc*MR)]
    A("v_lshrrev_b32 v4, 4, v1"); A("v_bfe_u32 v5, v1, 2, 2"); A("v_and_b32 v6, 3, v1")
    A("v_lshrrev_b32 v7, 1, v4"); A("v_lshlrev_b32 v7, 2, v7"); A("v_add_u32 v7, v7, v5"); A(f"v_mul_u32_u24 v7, {rowB}, v7")
    A("v_and_b32 v8, 1, v4"); A("v_lshlrev_b32 v8, 1, v8"); A("v_lshrrev_b32 v9, 1, v6"); A("v_add_u32 v8, v8, v9"); A("v_lshlrev_b32 v8, 4, v8")
    A("v_and_b32 v9, 1, v6"); A("v_lshlrev_b32 v9, 3, v9"); A("v_add_u32 v8, v8, v9"); A("v_add_u32 v7, v7, v8")
    nwin = (S + 15) // 16; TA = 16
    for nb in range(NB):
        A(f"v_xor_b32 v8, {nb}, v5"); A("v_lshlrev_b32 v8, 6, v8"); A(f"v_add_u32 v{TA+nb}, v7, v8")
        for wn in range(1, nwin): A(f"v_add_u32 v{TA+wn*NB+nb}, {wn*65536}, v{TA+nb}")
    epi_addr(A)
    ACC = 128; RING = 8; WB = 32
    uses = [(s_, nb) for ph in phases for s_ in range(S) for nb in ph]
    lg_n = [0]; lg_tag = {}; landed = set()
    def wread(i):
        s_, nb = uses[i]
        c = s_ // spc
        if c not in landed and part != 'main':
            vm.wait(('D', c)); A("s_barrier"); landed.add(c)
            if c == 0: stamp(A, 1)
        ar = TA + (s_ // 16) * NB + nb; off = (s_ % 16) * 16 * rowB; r = WB + 4*(i % RING)
        A(f"ds_read_b64_tr_b16 v[{r}:{r+1}], v{ar} offset:{off}"); A(f"ds_read_b64_tr_b16 v[{r+2}:{r+3}], v{ar} offset:{off+8*rowB}")
        lg_n[0] += 2; lg_tag[i] = lg_n[0]
    for i in range(D): wread(i)
    epq = []
    done_nb = []
    phase_end = {}
    k = 0
    for ph in phases:
        k += S * len(ph); phase_end[k - 1] = ph
    hold = 0
    nmf = len(uses) * MR; mi = 0
    for i, (s_, nb) in enumerate(uses):
        first_phase = i < S * len(phases[0])
        if first_phase: vm.wait(*[('A', s_*MR + mr) for mr in range(MR)])
        A(f"s_waitcnt lgkmcnt({min(15, lg_n[0] - lg_tag[i])})")
        for mr in range(MR):
            w = f"v[{WB+4*(i%RING)}:{WB+4*(i%RING)+3}]"; x_ = f"a[{4*(s_*MR+mr)}:{4*(s_*MR+mr)+3}]"
            d0 = ACC + 16*(mr*NB + nb); d = f"v[{d0}:{d0+15}]"
            A(f"v_mfma_f32_32x32x16_bf16 {d}, {w}, {x_}, {'0' if s_ == 0 else d}")
            mi += 1
            if mr == MR - 1 and i + D < len(uses): wread(i + D)
            if rest:
                for _ in range(2 if MR == 2 else 1):
                    if rest:
                        op = rest.pop(0)
                        if op[0] == 'd': dma(op[1], op[2])
                        else: aload(op[1])
            elif hold > 0: hold -= 1
            elif epq:
                left = min(j for j in phase_end if j >= i) - i + 1
                per = max(1, min(5, -(-len(epq) // max(1, left * MR - 3))))
                n = 0
                while epq and n < per:
                    it = epq.pop(0)
                    if it[0] == 's':
                        vm.issue(it[1]); n += 2
                    else: A(it[1]); n += 1
        if i in phase_end:
            assert not rest
            for nb2 in phase_end[i]:
                for mr in range(MR): epq += epi_block(ACC + 16*(mr*NB + nb2), mr, nb2)
            hold = 3
    if not fused: stamp(A, 2)
    A("s_nop 7"); A("s_nop 7")
    for it in epq:
        if it[0] == 's': vm.issue(it[1])
        else: A(it[1])
    if fused: return
    if PROF: A("s_waitcnt vmcnt(0)")
    stamp(A, 3)
    stamp_out(A, 4, prof_wg, 16, 0, 0)
    A.label(E); A("s_endpgm")
    return kernel_head(name) + A.text() + kernel_desc(name, 512, accum=256), f"; @launch kernel={name} grid=({nwg},1,1) block=(256,1,1) lds={lds}\n"

def gen_oproj2(F=None, part=None):
    def ids(A):
        A("s_and_b32 s15, s2, 7"); A("s_bfe_u32 s14, s2, 0x30003"); A("s_lshr_b32 s17, s2, 6")
        A("s_lshl_b32 s20, s15, 19"); A("s_lshl_b32 s18, s17, 8"); A("s_add_u32 s20, s20, s18")
        A("s_lshl_b32 s21, s14, 3"); A("s_lshl_b32 s18, s16, 1"); A("s_add_u32 s21, s21, s18")
        A("s_mov_b32 s22, s21")
        A("s_lshl_b32 s21, s21, 18"); A("s_lshl_b32 s18, s15, 15"); A("s_add_u32 s21, s21, s18"); A(f"s_add_u32 s21, s21, {WS_CTX}")
    def epi_addr(A):
        A("s_lshl_b32 s40, s22, 18"); A("s_lshl_b32 s41, s15, 15"); A("s_add_u32 s40, s40, s41"); A("s_lshl_b32 s41, s17, 13"); A("s_add_u32 s40, s40, s41")
        A(f"s_add_u32 s40, s40, {WS_PART}"); A("s_add_u32 s41, s40, 4096")
        A(f"s_add_u32 s42, s40, {1 << 18}"); A("s_add_u32 s43, s42, 4096")
    def epi_block(a0, mr, nb):
        it = []
        for t in range(2):
            for i in range(4*t, 4*t+4): it.append(('v', f"v_cvt_pk_bf16_f32 v{a0+i}, v{a0+2*i}, v{a0+2*i+1}"))
        for t in range(2):
            f = 2*nb + t
            it.append(('s', f"buffer_store_dwordx4 v[{a0+4*t}:{a0+4*t+3}], v2, s[32:35], s{40 + 2*mr + f//4} offen offset:{(f%4)*1024} {STC}"))
        return it
    return gemm2("oproj_kernel", 256, 32, 2, [(0, 1), (2,), (3,)], 'wo', 1024, 4096*512*2, 4, ids, 262144, epi_addr, epi_block, 131072, F=F, part=part)

def gen_oproj3(F=None, part=None):
    def ids(A):
        A("s_bfe_u32 s15, s2, 0x20001" if OMAP else "s_and_b32 s15, s2, 3"); A("s_and_b32 s14, s2, 1" if OMAP else "s_bfe_u32 s14, s2, 0x10002"); A("s_lshl_b32 s14, s14, 3"); A("s_bfe_u32 s17, s2, 0x30003"); A("s_add_u32 s14, s14, s17"); A("s_lshr_b32 s17, s2, 6")
        A("s_lshl_b32 s20, s15, 20"); A("s_lshl_b32 s18, s17, 8"); A("s_add_u32 s20, s20, s18")
        A("s_lshl_b32 s22, s14, 2"); A("s_add_u32 s22, s22, s16")
        A("s_lshl_b32 s21, s22, 18"); A("s_lshl_b32 s18, s15, 16"); A("s_add_u32 s21, s21, s18"); A(f"s_add_u32 s21, s21, {WS_CTX}")
    def epi(A, ACC, vm):
        A("s_lshl_b32 s18, s22, 18"); A("s_lshl_b32 s19, s15, 15"); A("s_add_u32 s18, s18, s19"); A("s_lshl_b32 s19, s17, 13"); A("s_add_u32 s18, s18, s19")
        A(f"s_add_u32 s18, s18, {WS_PART}"); A("s_add_u32 s19, s18, 4096")
        for nb in range(4):
            a0 = ACC + 16*nb
            for i in range(8): A(f"v_cvt_pk_bf16_f32 v{a0+i}, v{a0+2*i}, v{a0+2*i+1}")
            for t in range(2):
                f = 2*nb + t
                A(f"buffer_store_dwordx4 v[{a0+4*t}:{a0+4*t+3}], v2, s[32:35], s{18 + f//4} offen offset:{(f%4)*1024} {STC}")
    return gemm("oproj_kernel", 256, 64, 1, 4, 256, True, 'wo', 1024, 4096*512*2, 8, int(os.environ.get("OPR", "32")), ids, 0, epi, 131072, WD=3, F=F, part=part, ring=4)

def gen_oproj4(F=None, part=None):
    def ids(A):
        A("s_bfe_u32 s15, s2, 0x20001" if OMAP else "s_and_b32 s15, s2, 3"); A("s_and_b32 s14, s2, 1" if OMAP else "s_bfe_u32 s14, s2, 0x10002"); A("s_lshl_b32 s14, s14, 3"); A("s_bfe_u32 s17, s2, 0x30003"); A("s_add_u32 s14, s14, s17"); A("s_lshr_b32 s17, s2, 6")
        A("s_lshl_b32 s20, s15, 20"); A("s_lshl_b32 s18, s17, 8"); A("s_add_u32 s20, s20, s18")
        A("s_lshl_b32 s22, s14, 2"); A("s_add_u32 s22, s22, s16")
        A("s_lshl_b32 s21, s22, 18"); A("s_lshl_b32 s18, s15, 16"); A("s_add_u32 s21, s21, s18"); A(f"s_add_u32 s21, s21, {WS_CTX}")
        A("s_lshl_b32 s40, s22, 18"); A("s_lshl_b32 s41, s15, 15"); A("s_add_u32 s40, s40, s41"); A("s_lshl_b32 s41, s17, 13"); A("s_add_u32 s40, s40, s41")
        A(f"s_add_u32 s40, s40, {WS_PART}"); A("s_add_u32 s41, s40, 4096")
    def blk(ACC, half):
        it = []
        for nb in range(2*half, 2*half + 2):
            a0 = ACC + 16*nb
            for t in range(2):
                for i in range(4*t, 4*t + 4): it.append(('v', f"v_cvt_pk_bf16_f32 v{a0+i}, v{a0+2*i}, v{a0+2*i+1}"))
            for t in range(2):
                f = 2*nb + t
                it.append(('s', f"buffer_store_dwordx4 v[{a0+4*t}:{a0+4*t+3}], v2, s[32:35], s{40 + f//4} offen offset:{(f%4)*1024} {STC}"))
        return it
    def mid(A, ACC): return blk(ACC, 0)
    def epi(A, ACC, vm):
        for it in blk(ACC, 1): A(it[1])
    return gemm("oproj_kernel", 256, 64, 1, 2, 128, True, 'wo', 1024, 4096*512*2, 8, 64, ids, 0, epi, 131072, WD=int(os.environ.get("OWD", "4")), F=F, part=part, ring=8, passes=2, mid=mid)

OMAP = os.environ.get("OMAP", "0") == "1"
M1MAP = os.environ.get("M1MAP", "1") == "1"
def m1ids(A, smt, snt):
    if M1MAP:
        A(f"s_and_b32 s{smt}, s2, 3"); A(f"s_lshl_b32 s{smt}, s{smt}, 2"); A(f"s_bfe_u32 s{snt}, s2, 0x20003"); A(f"s_add_u32 s{smt}, s{smt}, s{snt}")
        A(f"s_bfe_u32 s{snt}, s2, 0x10002"); A(f"s_mul_i32 s{snt}, s{snt}, 7"); A(f"s_lshr_b32 s65, s2, 5"); A(f"s_add_u32 s{snt}, s{snt}, s65")
    else:
        A(f"s_and_b32 s{smt}, s2, 15"); A(f"s_lshr_b32 s{snt}, s2, 4")

def gen_mlp12(F=None, part=None):
    def ids(A):
        m1ids(A, 14, 17)
        A("s_lshl_b32 s20, s17, 8")
        A("s_lshl_b32 s22, s14, 2"); A("s_add_u32 s22, s22, s16")
        A("s_lshl_b32 s21, s22, 15"); A(f"s_add_u32 s21, s21, {WS_H2}")
    def epi_addr(A):
        A(f"s_mul_i32 s40, s22, {112*1024}"); A("s_lshl_b32 s41, s17, 13"); A("s_add_u32 s40, s40, s41"); A(f"s_add_u32 s40, s40, {WS_HID}"); A("s_add_u32 s41, s40, 4096")
    def epi_block(a0, mr, nb):
        it = []; T = 64 + 16 * (nb % 2)
        for i in range(16): it.append(('v', f"v_mul_f32 v{T+i}, {hx(-LOG2E)}, v{a0+i}"))
        for i in range(16): it.append(('v', f"v_exp_f32 v{T+i}, v{T+i}"))
        for i in range(16): it.append(('v', f"v_add_f32 v{T+i}, 1.0, v{T+i}"))
        for i in range(16): it.append(('v', f"v_rcp_f32 v{T+i}, v{T+i}"))
        for i in range(16): it.append(('v', f"v_mul_f32 v{a0+i}, v{a0+i}, v{T+i}"))
        for i in range(8): it.append(('v', f"v_cvt_pk_bf16_f32 v{a0+i}, v{a0+2*i}, v{a0+2*i+1}"))
        for t in range(2):
            f = 2*nb + t
            it.append(('s', f"buffer_store_dwordx4 v[{a0+4*t}:{a0+4*t+3}], v2, s[32:35], s{40 + f//4} offen offset:{(f%4)*1024} {STC}"))
        return it
    return gemm2("mlp1_kernel", 224, 32, 1, [(0, 1), (2,), (3,)], 'w1', 3584, 512*1792*2, 4, ids, 0, epi_addr, epi_block, 131072, D=6, F=F, part=part)

def gen_oproj():
    def ids(A):
        A("s_and_b32 s15, s2, 7"); A("s_bfe_u32 s14, s2, 0x30003"); A("s_lshr_b32 s17, s2, 6")
        A("s_lshl_b32 s20, s15, 19"); A("s_lshl_b32 s18, s17, 8"); A("s_add_u32 s20, s20, s18")
        A("s_lshl_b32 s21, s14, 3"); A("s_lshl_b32 s18, s16, 1"); A("s_add_u32 s21, s21, s18")
        A("s_mov_b32 s22, s21")
        A("s_lshl_b32 s21, s21, 18"); A("s_lshl_b32 s18, s15, 15"); A("s_add_u32 s21, s21, s18"); A(f"s_add_u32 s21, s21, {WS_CTX}")
    def epi(A, ACC, vm):
        A("s_lshl_b32 s18, s22, 18"); A("s_lshl_b32 s19, s15, 15"); A("s_add_u32 s18, s18, s19"); A("s_lshl_b32 s19, s17, 13"); A("s_add_u32 s18, s18, s19")
        A(f"s_add_u32 s18, s18, {WS_PART}"); A("s_add_u32 s19, s18, 4096")
        A(f"s_add_u32 s40, s18, {1 << 18}"); A("s_add_u32 s41, s40, 4096")
        for mr in range(2):
            for nb in range(4):
                a0 = ACC + 16*(mr*4 + nb)
                for i in range(8): A(f"v_cvt_pk_bf16_f32 v{a0+i}, v{a0+2*i}, v{a0+2*i+1}")
                for t in range(2):
                    f = 2*nb + t; sb = (18 if mr == 0 else 40) + f // 4
                    A(f"buffer_store_dwordx4 v[{a0+4*t}:{a0+4*t+3}], v2, s[32:35], s{sb} offen offset:{(f%4)*1024} {STC}")
    return gemm("oproj_kernel", 256, 32, 2, 4, 256, True, 'wo', 1024, 4096*512*2, 4, 32, ids, 262144, epi, 131072)

def gen_red():
    name = "red_kernel"; A = Asm(); E = f"{name}_end"
    A(f"s_cmp_ge_u32 s2, 256"); A(f"s_cbranch_scc1 {E}")
    stamp(A, 0)
    A(f"s_load_dwordx2 s[4:5], s[0:1], {KA['x']}"); A(f"s_load_dwordx2 s[10:11], s[0:1], {KA['ws']}")
    A("v_lshrrev_b32 v1, 6, v0"); A("s_nop 0"); A("v_readfirstlane_b32 s16, v1"); A("v_and_b32 v1, 63, v0")
    A("s_lshr_b32 s17, s2, 2"); A("s_and_b32 s14, s2, 3")
    A("v_lshrrev_b32 v4, 4, v1"); A("v_bfe_u32 v5, v1, 3, 1"); A("v_and_b32 v6, 7, v1")
    A("v_lshlrev_b32 v2, 10, v4"); A("v_lshlrev_b32 v7, 9, v5"); A("v_add_u32 v2, v2, v7"); A("v_lshlrev_b32 v7, 4, v6"); A("v_add_u32 v2, v2, v7")
    A("v_lshlrev_b32 v8, 4, v4"); A("v_lshlrev_b32 v7, 2, v5"); A("v_add_u32 v8, v8, v7")
    A("v_lshlrev_b32 v3, 1, v8"); A("v_lshlrev_b32 v7, 10, v6"); A("v_add_u32 v3, v3, v7"); A("v_lshlrev_b32 v9, 2, v8")
    A("s_lshl_b32 s15, s16, 12"); A("s_lshl_b32 s18, s14, 7"); A("s_add_u32 s15, s15, s18")
    A("s_waitcnt lgkmcnt(0)")
    srd(A, 20, 4, 2048*512*2); srd(A, 32, 10, WS_SIZE)
    A("s_lshl_b32 s18, s17, 18"); A("s_add_u32 s18, s18, s15"); A(f"s_add_u32 s18, s18, {WS_PART}")
    P = 32
    for ks in range(8):
        A(f"buffer_load_dwordx4 v[{P+4*ks}:{P+4*ks+3}], v2, s[32:35], s18 offen")
        if ks < 7: A("s_add_u32 s18, s18, 32768")
    A("s_lshl_b32 s19, s17, 15"); A("s_lshl_b32 s18, s14, 13"); A("s_add_u32 s19, s19, s18"); A("s_lshl_b32 s18, s16, 7"); A("s_add_u32 s19, s19, s18")
    A("buffer_load_dwordx2 v[24:25], v3, s[20:23], s19 offen"); A("buffer_load_dwordx2 v[26:27], v3, s[20:23], s19 offen offset:16")
    A("s_lshl_b32 s18, s16, 8")
    for (reg, m) in ((64, 2), (72, 3), (80, 4)):
        A(f"s_add_u32 s19, s18, {WS_MOD + m*2048}")
        A(f"buffer_load_dwordx4 v[{reg}:{reg+3}], v9, s[32:35], s19 offen"); A(f"buffer_load_dwordx4 v[{reg+4}:{reg+7}], v9, s[32:35], s19 offen offset:32")
    A("v_lshlrev_b32 v12, 5, v6"); A("s_lshl_b32 s18, s16, 2"); A("v_add_u32 v13, s18, v12")
    S_ = 96
    for ks in range(8):
        A(f"s_waitcnt vmcnt({7 - ks + 8})")
        if ks == 0: unpack_bf16(A, P, S_, 4)
        else:
            unpack_bf16(A, P + 4*ks, S_ + 8, 4)
            for i in range(8): A(f"v_add_f32 v{S_+i}, v{S_+i}, v{S_+8+i}")
    round_bf16_inplace(A, S_, 8, 10)
    A("s_waitcnt vmcnt(0)")
    unpack_bf16(A, 24, 40, 4)
    for i in range(8): A(f"v_mul_f32 v{S_+i}, v{S_+i}, v{64+i}")
    round_bf16_inplace(A, S_, 8, 10)
    for i in range(8): A(f"v_add_f32 v{40+i}, v{40+i}, v{S_+i}")
    for i in range(4): A(f"v_cvt_pk_bf16_f32 v{24+i}, v{40+2*i}, v{41+2*i}")
    A("s_lshl_b32 s19, s17, 15"); A("s_add_u32 s19, s19, s15"); A(f"s_add_u32 s18, s19, {WS_X1}")
    A("buffer_store_dwordx4 v[24:27], v2, s[32:35], s18 offen")
    unpack_bf16(A, 24, 40, 4)
    for i in range(8): A(f"v_add_f32 v{80+i}, 1.0, v{80+i}")
    def rowsum(t, off):
        A("s_nop 1"); A(f"v_add_f32_dpp v{t}, v{t}, v{t} row_ror:8 row_mask:0xf bank_mask:0xf")
        A(f"v_mov_b32 v11, v{t}"); A("s_nop 1"); A(f"v_permlane16_swap_b32 v{t}, v11"); A("s_nop 1"); A(f"v_add_f32 v{t}, v{t}, v11")
        A(f"v_mov_b32 v11, v{t}"); A("s_nop 1"); A(f"v_permlane32_swap_b32 v{t}, v11"); A("s_nop 1"); A(f"v_add_f32 v{t}, v{t}, v11")
        A(f"ds_write_b32 v13, v{t} offset:{off}")
        A("s_waitcnt lgkmcnt(0)"); A("s_barrier")
        A(f"ds_read_b128 v[56:59], v12 offset:{off}"); A(f"ds_read_b128 v[60:63], v12 offset:{off+16}")
        A("s_waitcnt lgkmcnt(0)")
        for i in range(4): A(f"v_add_f32 v{56+i}, v{56+i}, v{60+i}")
        A("v_add_f32 v56, v56, v57"); A("v_add_f32 v58, v58, v59"); A(f"v_add_f32 v{t}, v56, v58")
    t = 10
    A(f"v_add_f32 v{t}, v40, v41")
    for i in range(2, 8): A(f"v_add_f32 v{t}, v{t}, v{40+i}")
    rowsum(t, 0)
    A(f"v_mul_f32 v{t}, {hx(-1.0/512)}, v{t}")
    for i in range(8): A(f"v_add_f32 v{40+i}, v{40+i}, v{t}")
    A(f"v_mul_f32 v{t}, v40, v40")
    for i in range(1, 8): A(f"v_fmac_f32 v{t}, v{40+i}, v{40+i}")
    rowsum(t, 256)
    A(f"v_mul_f32 v{t}, {hx(1.0/512)}, v{t}"); A(f"v_add_f32 v{t}, {hx(1e-5)}, v{t}"); A(f"v_rsq_f32 v{t}, v{t}"); A("s_nop 0")
    for i in range(8): A(f"v_mul_f32 v{40+i}, v{40+i}, v{t}")
    for i in range(8): A(f"v_fma_f32 v{40+i}, v{40+i}, v{80+i}, v{72+i}")
    for i in range(4): A(f"v_cvt_pk_bf16_f32 v{28+i}, v{40+2*i}, v{41+2*i}")
    A(f"s_add_u32 s18, s19, {WS_H2}")
    A("buffer_store_dwordx4 v[28:31], v2, s[32:35], s18 offen")
    if PROF: A("s_waitcnt vmcnt(0)")
    stamp(A, 1)
    stamp_out(A, 2, 37, 16, 0, 0)
    A.label(E); A("s_endpgm")
    return kernel_head(name) + A.text() + kernel_desc(name, 128), f"; @launch kernel={name} grid=(256,1,1) block=(512,1,1) lds=1024\n"

def gen_mlp1():
    def ids(A):
        A("s_and_b32 s14, s2, 15"); A("s_lshr_b32 s17, s2, 4")
        A("s_lshl_b32 s20, s17, 8")
        A("s_lshl_b32 s22, s14, 2"); A("s_add_u32 s22, s22, s16")
        A("s_lshl_b32 s21, s22, 15"); A(f"s_add_u32 s21, s21, {WS_H2}")
    def epi(A, ACC, vm):
        A(f"s_mul_i32 s18, s22, {112*1024}"); A("s_lshl_b32 s19, s17, 13"); A("s_add_u32 s18, s18, s19"); A(f"s_add_u32 s18, s18, {WS_HID}"); A("s_add_u32 s19, s18, 4096")
        for nb in range(4):
            a0 = ACC + 16*nb
            for i in range(16): A(f"v_mul_f32 v{32+i}, {hx(-LOG2E)}, v{a0+i}")
            for i in range(16): A(f"v_exp_f32 v{32+i}, v{32+i}")
            for i in range(16): A(f"v_add_f32 v{32+i}, 1.0, v{32+i}")
            for i in range(16): A(f"v_rcp_f32 v{32+i}, v{32+i}")
            for i in range(16): A(f"v_mul_f32 v{a0+i}, v{a0+i}, v{32+i}")
            for i in range(8): A(f"v_cvt_pk_bf16_f32 v{a0+i}, v{a0+2*i}, v{a0+2*i+1}")
            for t in range(2):
                f = 2*nb + t
                A(f"buffer_store_dwordx4 v[{a0+4*t}:{a0+4*t+3}], v2, s[32:35], s{18 + f//4} offen offset:{(f%4)*1024} {STC}")
    return gemm("mlp1_kernel", 224, 32, 1, 4, 256, True, 'w1', 3584, 512*1792*2, 4, 32, ids, 0, epi, 131072)

M2MAP = os.environ.get("M2MAP", "1") == "1"
def m2ids(A, smt, snt):
    if M2MAP and os.environ.get("FUSE", "1") == "1":
        A(f"s_and_b32 s{smt}, s2, 3"); A(f"s_lshl_b32 s{smt}, s{smt}, 2"); A(f"s_bfe_u32 s{snt}, s2, 0x20003"); A(f"s_add_u32 s{smt}, s{smt}, s{snt}")
        A(f"s_bfe_u32 s{snt}, s2, 0x10002"); A(f"s_lshl_b32 s{snt}, s{snt}, 3"); A(f"s_lshr_b32 s65, s2, 5"); A(f"s_add_u32 s{snt}, s{snt}, s65")
    else:
        A(f"s_and_b32 s{smt}, s2, 15"); A(f"s_lshr_b32 s{snt}, s2, 4")

def gen_mlp2(F=None, part=None):
    def ids(A):
        m2ids(A, 14, 17)
        A("s_lshl_b32 s20, s17, 6")
        A("s_lshl_b32 s22, s14, 2"); A("s_add_u32 s22, s22, s16")
        A(f"s_mul_i32 s21, s22, {112*1024}"); A(f"s_add_u32 s21, s21, {WS_HID}")
    def pre(A):
        A("v_lshrrev_b32 v5, 5, v1")
        A("s_lshl_b32 s19, s22, 15"); A("s_lshl_b32 s23, s17, 11"); A("s_add_u32 s19, s19, s23"); A(f"s_add_u32 s19, s19, {WS_X1}")
        for t in range(2): A(f"buffer_load_dwordx4 v[{96+4*t}:{99+4*t}], v2, s[32:35], s19 offen offset:{1024*t}{' sc1' if F is not None else ''}")
        A("v_lshlrev_b32 v7, 4, v5"); A("s_lshl_b32 s19, s17, 7"); A(f"s_add_u32 s19, s19, {WS_MOD + 5*2048}")
        for a_ in range(4): A(f"buffer_load_dwordx4 v[{104+4*a_}:{107+4*a_}], v7, s[32:35], s19 offen offset:{32*a_}")
    def epi(A, ACC, vm):
        A("v_and_b32 v4, 31, v1"); A("v_lshrrev_b32 v5, 5, v1")
        A("v_lshlrev_b32 v6, 10, v4"); A("v_lshlrev_b32 v7, 3, v5"); A("v_add_u32 v6, v6, v7")
        A("s_lshl_b32 s18, s22, 15"); A("s_lshl_b32 s19, s17, 6"); A("s_add_u32 s18, s18, s19")
        round_bf16_inplace(A, ACC, 16, 10)
        for i in range(16): A(f"v_mul_f32 v{ACC+i}, v{ACC+i}, v{104+i}")
        round_bf16_inplace(A, ACC, 16, 10)
        unpack_bf16(A, 96, 64, 8)
        for i in range(16): A(f"v_add_f32 v{ACC+i}, v{ACC+i}, v{64+i}")
        for i in range(8): A(f"v_cvt_pk_bf16_f32 v{32+i}, v{ACC+2*i}, v{ACC+2*i+1}")
        for a_ in range(4): A(f"buffer_store_dwordx2 v[{32+2*a_}:{33+2*a_}], v6, s[36:39], s18 offen offset:{16*a_}")
    return gemm("mlp2_kernel", 256, 112, 1, 1, 64, True, 'w2', 1024, 1792*512*2, 7, 32, ids, 0, epi, 114688, WD=6, F=F, part=part, pre=pre)

def gen_tail():
    if os.environ.get("FUSE", "1") == "1":
        import gen_fused
        return [gen_fused.gen_fused()]
    return [gen_oproj2(), gen_red(), gen_mlp12(), gen_mlp2()]
```

```python
from gen_common import *
import gen_tail as T
SPIN_MAX = 30000

def sync(A, wflag, pflag, nmem, between=None, poll=True, pre=None):
    L0, L1, L2, L3 = A.new("sy"), A.new("sy"), A.new("sy"), A.new("sy")
    if pre: pre()
    else: A("s_waitcnt vmcnt(0)")
    A("s_barrier")
    A("s_cmp_lg_u32 s16, 0"); A(f"s_cbranch_scc1 {L1}")
    A("v_mov_b32 v3, 1"); A("v_mov_b32 v4, 0"); A("s_mov_b64 exec, 1")
    A(f"buffer_store_dword v3, v4, s[32:35], s{wflag} offen sc1")
    A("s_mov_b64 exec, -1")
    if between:
        A(f"s_branch {L0}")
        A.label(L1)
        between()
        A(f"s_branch {L3}")
        A.label(L0)
    else: A.label(L1)
    if not poll: return
    A("s_cmp_lg_u32 s16, 0"); A(f"s_cbranch_scc1 {L3}")
    A(f"v_min_u32 v4, {nmem-1}, v1"); A("v_lshlrev_b32 v4, 2, v4"); A("s_mov_b32 s46, 0")
    A.label(L2)
    A(f"buffer_load_dword v3, v4, s[32:35], s{pflag} offen sc1")
    A("s_waitcnt vmcnt(0)")
    A("v_cmp_ne_u32 vcc, 1, v3"); A(f"s_cbranch_vccz {L3}")
    A("s_sleep 1"); A("s_add_u32 s46, s46, 1"); A(f"s_cmp_lt_u32 s46, {SPIN_MAX}"); A(f"s_cbranch_scc1 {L2}")
    A.label(L3)
    A("s_waitcnt vmcnt(0)"); A("s_barrier")

def dma3(A, sptr, wbytes, rowB, wstride, ngrp, colshift):
    RP = 1024 // rowB
    srd(A, 24, sptr, wbytes)
    if rowB == 256:
        A("v_lshrrev_b32 v6, 4, v1"); A("v_and_b32 v5, 15, v1"); A("v_lshlrev_b32 v7, 2, v6"); A("v_xor_b32 v5, v5, v7")
    else:
        A("v_lshrrev_b32 v6, 2, v1"); A("v_and_b32 v5, 3, v1")
    A("v_lshlrev_b32 v5, 4, v5"); A(f"s_mov_b32 s18, {wstride}"); A("v_mul_lo_u32 v7, v6, s18"); A("v_add_u32 v10, v7, v5")
    A("s_sub_u32 s18, s16, 1"); A(f"s_mul_i32 s19, s18, {RP*wstride}");
    if rowB == 256: T.m1ids(A, 66, 20)
    else: T.m2ids(A, 66, 20)
    A(f"s_lshl_b32 s20, s20, {colshift}"); A("s_add_u32 s19, s19, s20")
    A("s_lshl_b32 m0, s18, 10")
    n = -(-ngrp // 3)
    for i in range(n):
        A("s_nop 0")
        A("buffer_load_dwordx4 v10, s[24:27], s19 offen lds")
        if i < n - 1: A(f"s_add_u32 s19, s19, {3*RP*wstride}"); A("s_add_u32 m0, m0, 3072")

def red4(A, part):
    P, X, GA, SB, CB, S_, TMP, XF = 32, 96, 104, 120, 136, 152, 168, 176
    if part == 'pre':
        red4_pre(A, X, GA, SB, CB); return
    A("s_lshl_b32 s18, s60, 18"); A("s_add_u32 s18, s18, s15"); A(f"s_add_u32 s18, s18, {WS_PART}")
    for ks in range(NKS):
        A("s_add_u32 s19, s18, 4096")
        A(f"buffer_load_dwordx4 v[{P+8*ks}:{P+8*ks+3}], v14, s[32:35], s18 offen sc1")
        A(f"buffer_load_dwordx4 v[{P+8*ks+4}:{P+8*ks+7}], v14, s[32:35], s19 offen sc1")
        if ks < NKS - 1: A("s_add_u32 s18, s18, 32768")
    nd = 0
    if W1LATE:
        A("s_mov_b32 s64, s15"); A("v_mov_b32 v16, v12"); A("v_mov_b32 v17, v13")
        srd(A, 24, 6, 512*1792*2)
        T.gen_mlp12(F=A, part='wdma'); nd = 32
        A("s_mov_b32 s15, s64"); A("v_mov_b32 v12, v16"); A("v_mov_b32 v13, v17")
    red4_main(A, P, X, GA, SB, CB, S_, TMP, XF, nd)

def red4_pre(A, X, GA, SB, CB):
    A("v_lshrrev_b32 v4, 4, v1"); A("v_bfe_u32 v5, v1, 3, 1"); A("v_and_b32 v6, 7, v1")
    A("v_lshlrev_b32 v14, 10, v4"); A("v_lshlrev_b32 v7, 9, v5"); A("v_add_u32 v14, v14, v7"); A("v_lshlrev_b32 v7, 4, v6"); A("v_add_u32 v14, v14, v7")
    A("v_lshlrev_b32 v8, 4, v4"); A("v_lshlrev_b32 v7, 2, v5"); A("v_add_u32 v8, v8, v7")
    A("v_lshlrev_b32 v15, 1, v8"); A("v_lshlrev_b32 v7, 10, v6"); A("v_add_u32 v15, v15, v7"); A("v_lshlrev_b32 v9, 2, v8")
    A("s_lshl_b32 s15, s16, 13"); A("s_lshl_b32 s18, s61, 7"); A("s_add_u32 s15, s15, s18")
    A("s_lshl_b32 s19, s60, 15"); A("s_lshl_b32 s18, s61, 13"); A("s_add_u32 s19, s19, s18"); A("s_lshl_b32 s18, s16, 8"); A("s_add_u32 s19, s19, s18")
    for u in range(2):
        A(f"buffer_load_dwordx2 v[{X+4*u}:{X+4*u+1}], v15, s[36:39], s19 offen offset:{128*u}"); A(f"buffer_load_dwordx2 v[{X+4*u+2}:{X+4*u+3}], v15, s[36:39], s19 offen offset:{128*u+16}")
    A("s_lshl_b32 s18, s16, 9")
    for (reg, m) in ((GA, 2), (SB, 3), (CB, 4)):
        A(f"s_add_u32 s19, s18, {WS_MOD + m*2048}")
        for u in range(2):
            A(f"buffer_load_dwordx4 v[{reg+8*u}:{reg+8*u+3}], v9, s[32:35], s19 offen offset:{256*u}"); A(f"buffer_load_dwordx4 v[{reg+8*u+4}:{reg+8*u+7}], v9, s[32:35], s19 offen offset:{256*u+32}")
    A("v_lshlrev_b32 v12, 4, v6"); A("s_lshl_b32 s18, s16, 2"); A("v_add_u32 v13, s18, v12")
    A(f"v_add_u32 v12, {LDSR}, v12"); A(f"v_add_u32 v13, {LDSR}, v13")

def red4_main(A, P, X, GA, SB, CB, S_, TMP, XF, nd):
    for ks in range(NKS):
        A(f"s_waitcnt vmcnt({2*(NKS-1) - 2*ks + nd})")
        if ks == 0: unpack_bf16(A, P, S_, 8)
        else:
            for u in range(2):
                unpack_bf16(A, P + 8*ks + 4*u, TMP, 4)
                for i in range(8): A(f"v_add_f32 v{S_+8*u+i}, v{S_+8*u+i}, v{TMP+i}")
    round_bf16_inplace(A, S_, 16, 10)
    unpack_bf16(A, X, XF, 8)
    for i in range(16): A(f"v_mul_f32 v{S_+i}, v{S_+i}, v{GA+i}")
    round_bf16_inplace(A, S_, 16, 10)
    for i in range(16): A(f"v_add_f32 v{XF+i}, v{XF+i}, v{S_+i}")
    for i in range(8): A(f"v_cvt_pk_bf16_f32 v{X+i}, v{XF+2*i}, v{XF+2*i+1}")
    A("s_lshl_b32 s19, s60, 15"); A("s_add_u32 s19, s19, s15"); A(f"s_add_u32 s18, s19, {WS_X1}")
    A(f"buffer_store_dwordx4 v[{X}:{X+3}], v14, s[32:35], s18 offen sc1"); A("s_add_u32 s18, s18, 4096")
    A(f"buffer_store_dwordx4 v[{X+4}:{X+7}], v14, s[32:35], s18 offen sc1")
    unpack_bf16(A, X, XF, 8)
    for i in range(16): A(f"v_add_f32 v{CB+i}, 1.0, v{CB+i}")
    def rowsum(t, off):
        A("s_nop 1"); A(f"v_add_f32_dpp v{t}, v{t}, v{t} row_ror:8 row_mask:0xf bank_mask:0xf")
        A(f"v_mov_b32 v11, v{t}"); A("s_nop 1"); A(f"v_permlane16_swap_b32 v{t}, v11"); A("s_nop 1"); A(f"v_add_f32 v{t}, v{t}, v11")
        A(f"v_mov_b32 v11, v{t}"); A("s_nop 1"); A(f"v_permlane32_swap_b32 v{t}, v11"); A("s_nop 1"); A(f"v_add_f32 v{t}, v{t}, v11")
        A(f"ds_write_b32 v13, v{t} offset:{off}")
        A("s_waitcnt lgkmcnt(0)"); A("s_barrier")
        A(f"ds_read_b128 v[56:59], v12 offset:{off}")
        A("s_waitcnt lgkmcnt(0)")
        A("v_add_f32 v56, v56, v57"); A("v_add_f32 v58, v58, v59"); A(f"v_add_f32 v{t}, v56, v58")
    t = 10
    A(f"v_add_f32 v{t}, v{XF}, v{XF+1}")
    for i in range(2, 16): A(f"v_add_f32 v{t}, v{t}, v{XF+i}")
    rowsum(t, 0)
    A(f"v_mul_f32 v{t}, {hx(-1.0/512)}, v{t}")
    for i in range(16): A(f"v_add_f32 v{XF+i}, v{XF+i}, v{t}")
    A(f"v_mul_f32 v{t}, v{XF}, v{XF}")
    for i in range(1, 16): A(f"v_fmac_f32 v{t}, v{XF+i}, v{XF+i}")
    rowsum(t, 128)
    A(f"v_mul_f32 v{t}, {hx(1.0/512)}, v{t}"); A(f"v_add_f32 v{t}, {hx(1e-5)}, v{t}"); A(f"v_rsq_f32 v{t}, v{t}"); A("s_nop 0")
    for i in range(16): A(f"v_mul_f32 v{XF+i}, v{XF+i}, v{t}")
    for i in range(16): A(f"v_fma_f32 v{XF+i}, v{XF+i}, v{CB+i}, v{SB+i}")
    for i in range(8): A(f"v_cvt_pk_bf16_f32 v{X+i}, v{XF+2*i}, v{XF+2*i+1}")
    A(f"s_add_u32 s18, s19, {WS_H2}")
    A(f"buffer_store_dwordx4 v[{X}:{X+3}], v14, s[32:35], s18 offen sc1"); A("s_add_u32 s18, s18, 4096")
    A(f"buffer_store_dwordx4 v[{X+4}:{X+7}], v14, s[32:35], s18 offen sc1")

NKS = 4
W1S2 = os.environ.get('W1S2', '1') == '1'
W1LATE = os.environ.get('W1LATE', '0') == '1'
LDSR = 131072

def gen_fused(name="tail_kernel"):
    A = Asm(); E = f"{name}_end"
    RT_ON[0] = True
    A("s_cmp_ge_u32 s2, 256"); A(f"s_cbranch_scc1 {E}")
    if os.environ.get("SPF", "0") == "1" and os.environ.get("SPFA", "1") == "1": code_pf(A, "tail_kernel", "tail_kernel_end", 0, 8, 2, 252, 70, True)
    stamp(A, 0)
    A(f"s_load_dwordx2 s[4:5], s[0:1], {KA['wo']}"); A(f"s_load_dwordx2 s[10:11], s[0:1], {KA['ws']}")
    A(f"s_load_dwordx2 s[6:7], s[0:1], {KA['w1']}"); A(f"s_load_dwordx2 s[8:9], s[0:1], {KA['w2']}")
    A(f"s_load_dwordx2 s[12:13], s[0:1], {KA['out']}"); A(f"s_load_dwordx2 s[56:57], s[0:1], {KA['x']}")
    A("v_lshrrev_b32 v1, 6, v0"); A("s_nop 0"); A("v_readfirstlane_b32 s16, v1"); A("v_and_b32 v1, 63, v0"); A("v_lshlrev_b32 v2, 4, v1")
    A("s_waitcnt lgkmcnt(0)")
    srd(A, 24, 4, 4096*512*2); srd(A, 32, 10, WS_SIZE)
    (T.gen_oproj4 if os.environ.get('OP4') else T.gen_oproj3)(F=A, part=None)
    stamp(A, 2)
    A("s_bfe_u32 s58, s2, 0x20001" if T.OMAP else "s_and_b32 s58, s2, 3"); A("s_lshr_b32 s59, s2, 6"); A("s_lshl_b32 s59, s59, 2"); A("s_add_u32 s58, s58, s59")
    A("s_and_b32 s59, s2, 1" if T.OMAP else "s_bfe_u32 s59, s2, 0x10002"); A("s_lshl_b32 s59, s59, 3"); A("s_bfe_u32 s60, s2, 0x30003"); A("s_add_u32 s59, s59, s60")
    A("s_lshl_b32 s60, s59, 2"); A("s_lshr_b32 s61, s58, 2"); A("s_add_u32 s60, s60, s61"); A("s_and_b32 s61, s58, 3")
    A("s_lshl_b32 s63, s59, 7"); A(f"s_add_u32 s63, s63, {WS_FLAG + 5120}"); A("s_lshl_b32 s62, s58, 2"); A("s_add_u32 s62, s62, s63")
    def w1dma():
        L = A.new("w1")
        A("s_cmp_ge_u32 s2, 224"); A(f"s_cbranch_scc1 {L}")
        dma3(A, 6, 512*1792*2, 256, 3584, 128, 8)
        A.label(L)
    def redpre():
        srd(A, 36, 56, 2048*512*2)
        red4(A, 'pre')
        A("s_waitcnt vmcnt(16)")
    sync(A, 62, 63, 16, None if (W1LATE or W1S2) else w1dma, True, redpre)
    stamp(A, 3)
    red4(A, 'main')
    stamp(A, 4)
    A("s_lshr_b32 s62, s60, 2"); A("s_lshl_b32 s62, s62, 7"); A("s_and_b32 s63, s60, 3"); A("s_lshl_b32 s63, s63, 4"); A("s_add_u32 s62, s62, s63")
    A("s_lshl_b32 s63, s61, 2"); A("s_add_u32 s62, s62, s63"); A(f"s_add_u32 s62, s62, {WS_FLAG + 1024}")
    T.m1ids(A, 63, 66); A("s_lshl_b32 s63, s63, 7"); A(f"s_add_u32 s63, s63, {WS_FLAG + 1024}")
    def w2dma():
        dma3(A, 8, 1792*512*2, 64, 1024, 112, 6)
    LN3, LP3 = A.new("n3"), A.new("p3")
    A("s_cmp_ge_u32 s2, 224"); A(f"s_cbranch_scc1 {LN3}")
    sync(A, 62, 63, 16, w1dma if W1S2 else None)
    stamp(A, 5)
    T.gen_mlp12(F=A, part='main')
    stamp(A, 6)
    T.m2ids(A, 63, 66); A("s_lshl_b32 s63, s63, 7"); A(f"s_add_u32 s63, s63, {WS_FLAG + 3072}")
    T.m1ids(A, 62, 66); A("s_lshl_b32 s62, s62, 7"); A("s_lshl_b32 s66, s66, 2"); A("s_add_u32 s62, s62, s66"); A(f"s_add_u32 s62, s62, {WS_FLAG + 3072}")
    A(f"s_branch {LP3}")
    A.label(LN3)
    sync(A, 62, 63, 16, None, poll=False)
    T.m2ids(A, 63, 66); A("s_lshl_b32 s63, s63, 7"); A(f"s_add_u32 s63, s63, {WS_FLAG + 3072}")
    A("s_add_u32 s62, s63, 124")
    A.label(LP3)
    sync(A, 62, 63, 14, w2dma)
    stamp(A, 7)
    srd(A, 36, 12, 2048*512*2)
    T.gen_mlp2(F=A, part='main')
    if PROF:
        A("s_waitcnt vmcnt(0)"); stamp(A, 1)
    if os.environ.get("RT") == "1": stamp_dump(A, 8, 16, 0)
    else: stamp_out(A, 8, int(os.environ.get("PWG", "37")), 16, 0, 0)
    RT_ON[0] = False
    A.label(E); A("s_endpgm")
    return kernel_head(name) + A.text() + kernel_desc(name, 512, accum=256), f"; @launch kernel={name} grid=(256,1,1) block=(256,1,1) lds={LDSR + 1024}\n"
```
